```python
import torch

def _softmax(x, axis=-1):
    return torch.softmax(x, dim=axis)

def _gelu(x):
    return torch.nn.functional.gelu(x, approximate='tanh')

def _silu(x):
    return torch.nn.functional.silu(x)

def _sigmoid(x):
    return torch.sigmoid(x)

def _layernorm(x, axis=-1, eps=1e-05):
    m = x.mean(dim=axis, keepdim=True)
    v = x.var(dim=axis, keepdim=True, unbiased=False)
    return (x - m) / torch.sqrt(v + eps)

def _scatter_add(tgt, idx, src, axis=0):
    return tgt.clone().index_add_(axis, idx, src)

def _segment_sum(src, seg, n):
    out = torch.zeros((n,) + src.shape[1:], dtype=src.dtype)
    return out.index_add_(0, seg, src)

def _pad(x, pw):
    flat = tuple((v for pair in reversed(pw) for v in pair))
    return torch.nn.functional.pad(x, flat)
kernel_name = 'gated_mix__mha_block__memory_aug_recurrent_mem_tr__prompt'

def setup_inputs():

    _w = lambda a: (lambda t: t.to(torch.bfloat16) if t.is_floating_point() else t)(torch.as_tensor(a))

    def _A_setup():
        B, S, D, H = (1, 2048, 640, 32)
        return {'x': _w((lambda *s: torch.randn(*s, dtype=torch.bfloat16) * 0.05)(B, S, D)), 'wqkv': _w((lambda *s: torch.randn(*s, dtype=torch.bfloat16) * 0.8)(D, 3 * D)), 'wo': _w((lambda *s: torch.randn(*s, dtype=torch.bfloat16) * 0.05)(D, D))}
    _A_in = _A_setup()

    def _B_setup():
        B, S, Dm = (1, 2048, 640)
        H, Dh = (32, 128)
        M, seg = (8, 32)
        seg = min(seg, S)
        S = S // seg * seg
        return {'x': _w((lambda *s: torch.randn(*s, dtype=torch.bfloat16) * 0.05)(B, S, Dm)), 'mem0': _w((lambda *s: torch.randn(*s, dtype=torch.bfloat16) * 0.8)(B, M, Dm)), 'Wq': _w((lambda *s: torch.randn(*s, dtype=torch.bfloat16) * 3.2)(Dm, H, Dh) * Dm ** (-0.5)), 'Wk': _w((lambda *s: torch.randn(*s, dtype=torch.bfloat16) * 3.2)(Dm, H, Dh) * Dm ** (-0.5)), 'Wv': _w((lambda *s: torch.randn(*s, dtype=torch.bfloat16) * 0.8)(Dm, H, Dh) * Dm ** (-0.5)), 'Wo': _w((lambda *s: torch.randn(*s, dtype=torch.bfloat16) * 0.8)(H, Dh, Dm) * (H * Dh) ** (-0.5)), 'seg_len': seg}
    _B_in = _B_setup()
    return {'A_x': _A_in['x'], 'A_wqkv': _A_in['wqkv'], 'A_wo': _A_in['wo'], 'B_x': _B_in['x'], 'B_mem0': _B_in['mem0'], 'B_Wq': _B_in['Wq'], 'B_Wk': _B_in['Wk'], 'B_Wv': _B_in['Wv'], 'B_Wo': _B_in['Wo'], 'B_seg_len': _B_in['seg_len'], 'gate_w': _w((lambda *s: torch.randn(*s, dtype=torch.bfloat16) * 0.05)(640) * 16.0)}

def reference(A_x, A_wqkv, A_wo, B_x, B_mem0, B_Wq, B_Wk, B_Wv, B_Wo, B_seg_len, gate_w):

    def _A_ref(x, wqkv, wo):
        B, S, D = x.shape
        H = 32
        Dh = D // H
        qkv = (lambda x, *d: x.permute(*d))((x @ wqkv).reshape(B, S, 3, H, Dh), 2, 0, 3, 1, 4)
        q, k, v = (qkv[0], qkv[1], qkv[2])
        scores = torch.einsum('bhqd,bhkd->bhqk', q, k) * Dh ** (-0.5)
        p = _softmax(scores, axis=-1)
        o = torch.einsum('bhqk,bhkd->bhqd', p, v)
        return (lambda x, *d: x.permute(*d))(o, 0, 2, 1, 3).reshape(B, S, D) @ wo

    def _B_ref(x, mem0, Wq, Wk, Wv, Wo, seg_len):
        B, S, Dm = x.shape
        H, Dh = (Wq.shape[1], Wq.shape[2])
        M = mem0.shape[1]
        scale = Dh ** (-0.5)
        n_seg = S // seg_len
        L = M + seg_len
        idx = torch.arange(L)
        mask = (idx[:, None] < M) | (idx[:, None] >= idx[None, :])
        mem = mem0
        outs = []
        for s in range(n_seg):
            xs = x[:, s * seg_len:(s + 1) * seg_len, :].clone()
            h = torch.concatenate([mem, xs], axis=1)
            q = torch.einsum('btd,dhe->bhte', h, Wq)
            k = torch.einsum('btd,dhe->bhte', h, Wk)
            v = torch.einsum('btd,dhe->bhte', h, Wv)
            scores = torch.einsum('bhqe,bhke->bhqk', q, k) * scale
            scores = torch.where(mask[None, None], scores, -1000000000.0)
            p = _softmax(scores, axis=-1)
            o = torch.einsum('bhqk,bhke->bhqe', p, v)
            o = torch.einsum('bhte,hed->btd', o, Wo)
            mem = o[:, :M, :].clone()
            outs.append(o[:, M:, :])
        return torch.concatenate(outs, axis=1)
    x = A_x
    g = _sigmoid((x * gate_w).sum(-1, keepdims=True))
    a = _A_ref(x, A_wqkv, A_wo)
    b = _B_ref(x, B_mem0, B_Wq, B_Wk, B_Wv, B_Wo, B_seg_len)
    return g * a + (1 - g) * b
```

```python
from asmlib import *
from layout import *
S_WS = 8
S_WAVE = 32
S_AH, S_AQ = 30, 31
S_KB = 33
S_T0, S_T1, S_T2 = 54, 55, 56
S_C = 57
S_KO, S_VO = 34, 35
V_KA, V_VA, V_OA = 4, 5, 6
V_M = 8
V_T = 10
V_Q = 16
V_K = 32
V_V = 40
V_P = 56
V_S = 64
V_O = 128

def gen_aattn(g, P):
    g.e(f"v_and_b32 v{V_T}, 31, v1"); g.e(f"v_lshrrev_b32 v{V_T+1}, 5, v1")
    g.e(f"v_lshlrev_b32 v{V_KA}, 6, v{V_T}"); g.e(f"v_lshl_add_u32 v{V_KA}, v{V_T+1}, 4, v{V_KA}")
    g.e(f"v_lshlrev_b32 v{V_VA}, 12, v{V_T}"); g.e(f"v_lshl_add_u32 v{V_VA}, v{V_T+1}, 4, v{V_VA}")
    g.e(f"s_lshl_b32 s{S_T0}, s{S_AH}, 17")
    g.e(f"s_add_u32 s{S_KO}, s{S_T0}, {hex(WS_KA)}"); g.e(f"s_add_u32 s{S_VO}, s{S_T0}, {hex(WS_VT)}")
    g.e(f"s_lshl_b32 s{S_T1}, s{S_AQ}, 8"); g.e(f"s_lshl_b32 s{S_T2}, s{S_WAVE}, 6"); g.e(f"s_add_u32 s{S_T1}, s{S_T1}, s{S_T2}")
    g.e(f"s_lshl_b32 s{S_T2}, s{S_T1}, 6"); g.e(f"s_add_u32 s{S_T2}, s{S_T2}, s{S_T0}"); g.e(f"s_add_u32 s{S_T2}, s{S_T2}, {hex(WS_QA)}")
    for t in range(2):
        for c in range(2):
            g.e(f"buffer_load_dwordx4 {v(V_Q+8*t+4*c,4)}, v{V_KA}, s[{S_WS}:{S_WS+3}], s{S_T2} offen offset:{2048*t+32*c} sc1")
    g.e(f"v_add_u32 v{V_OA}, s{S_T1}, v{V_T}"); g.e(f"v_mul_u32_u24 v{V_OA}, 1280, v{V_OA}")
    g.e(f"s_mul_i32 s{S_T1}, s{S_AH}, 40"); g.e(f"s_add_u32 s{S_T1}, s{S_T1}, {hex(WS_OA)}")
    g.e(f"v_add_u32 v{V_OA}, s{S_T1}, v{V_OA}"); g.e(f"v_lshl_add_u32 v{V_OA}, v{V_T+1}, 3, v{V_OA}")
    g.smov(S_C, 0x3ea52b5c)
    for t in range(2):
        g.e(f"v_mov_b32 v{V_M+t}, 0xf149f2ca")
        for r in range(16): g.e(f"v_mov_b32 v{V_O+16*t+r}, 0")
    def loadK(off_sgpr):
        for c in range(2):
            g.e(f"buffer_load_dwordx4 {v(V_K+4*c,4)}, v{V_KA}, s[{S_WS}:{S_WS+3}], s{off_sgpr} offen offset:{32*c} sc1")
    def loadV(buf, off_sgpr):
        for u in range(2):
            g.e(f"buffer_load_dwordx4 {v(V_V+8*buf+4*u,4)}, v{V_VA}, s[{S_WS}:{S_WS+3}], s{off_sgpr} offen offset:{32*u} sc1")
    def smfma(buf):
        for t in range(2):
            d = v(V_S+32*buf+16*t, 16)
            g.e(f"v_mfma_f32_32x32x16_bf16 {d}, {v(V_K,4)}, {v(V_Q+8*t,4)}, 0")
            g.e(f"v_mfma_f32_32x32x16_bf16 {d}, {v(V_K+4,4)}, {v(V_Q+8*t+4,4)}, {d}")
    loadK(S_KO)
    g.wait(vm=0)
    smfma(0)
    g.e(f"s_add_u32 s{S_KO}, s{S_KO}, 2048")
    loadK(S_KO)
    loadV(0, S_VO)
    g.smov(S_KB, 0)
    LOOP = P+"_loop"
    resc = []
    def softmax_pv(buf, t, first):
        S = V_S + 32*buf + 16*t; O = V_O + 16*t; m = V_M + t
        a_, b_ = V_T, V_T+1
        g.e(f"v_max3_f32 v{a_}, v{S}, v{S+1}, v{S+2}"); g.e(f"v_max3_f32 v{b_}, v{S+3}, v{S+4}, v{S+5}")
        g.e(f"v_max3_f32 v{a_}, v{a_}, v{S+6}, v{S+7}"); g.e(f"v_max3_f32 v{b_}, v{b_}, v{S+8}, v{S+9}")
        g.e(f"v_max3_f32 v{a_}, v{a_}, v{S+10}, v{S+11}"); g.e(f"v_max3_f32 v{b_}, v{b_}, v{S+12}, v{S+13}")
        g.e(f"v_max3_f32 v{a_}, v{a_}, v{S+14}, v{S+15}")
        g.e(f"v_max_f32 v{a_}, v{a_}, v{b_}")
        g.e(f"v_mov_b32 v{b_}, v{a_}")
        g.e("s_nop 1")
        g.e(f"v_permlane32_swap_b32 v{a_}, v{b_}")
        g.e("s_nop 0")
        g.e(f"v_max_f32 v{a_}, v{a_}, v{b_}")
        g.e(f"v_fma_f32 v{b_}, v{a_}, s{S_C}, -v{m}")
        g.e(f"v_cmp_lt_f32 vcc, 8.0, v{b_}") if False else g.e(f"v_cmp_gt_f32 vcc, v{b_}, v{V_T+5}")
        R = g.new(P+"rs"); B = g.new(P+"rb")
        g.e(f"s_cbranch_vccnz {R}")
        g.lbl(B)
        for r in range(16): g.e(f"v_fma_f32 v{S+r}, v{S+r}, s{S_C}, -v{m}")
        for r in range(16): g.e(f"v_exp_f32 v{S+r}, v{S+r}")
        g.e("s_nop 0")
        for r in range(8): g.e(f"v_cvt_pk_bf16_f32 v{V_P+r}, v{S+2*r}, v{S+2*r+1}")
        if first: g.wait(vm=4)
        else: g.e("s_nop 1")
        d = v(O, 16)
        g.e(f"v_mfma_f32_32x32x16_bf16 {d}, {v(V_V+8*buf,4)}, {v(V_P,4)}, {d}")
        g.e(f"v_mfma_f32_32x32x16_bf16 {d}, {v(V_V+8*buf+4,4)}, {v(V_P+4,4)}, {d}")
        resc.append((R, B, a_, m, O))
    g.e(f"v_mov_b32 v{V_T+5}, 0x41000000")
    g.lbl(LOOP)
    for par in range(2):
        g.wait(vm=2)
        smfma(1-par)
        g.e(f"s_add_u32 s{S_KO}, s{S_KO}, 2048"); g.e(f"s_add_u32 s{S_VO}, s{S_VO}, 64")
        loadK(S_KO)
        loadV(1-par, S_VO)
        softmax_pv(par, 0, True)
        softmax_pv(par, 1, False)
    g.e(f"s_add_u32 s{S_KB}, s{S_KB}, 2"); g.e(f"s_cmp_lt_u32 s{S_KB}, 64"); g.e(f"s_cbranch_scc1 {LOOP}")
    g.c("epilogue")
    g.wait(vm=0)
    g.nop(12)
    for t in range(2):
        O = V_O + 16*t
        g.e(f"v_mov_b32 v{V_T}, v{O+8}"); g.e(f"v_mov_b32 v{V_T+1}, v{O+8}")
        g.e("s_nop 1")
        g.e(f"v_permlane32_swap_b32 v{V_T}, v{V_T+1}")
        g.e("s_nop 0")
        g.e(f"v_rcp_f32 v{V_T+1}, v{V_T+1}")
        g.e("s_nop 0")
        for r in range(12): g.e(f"v_mul_f32 v{O+r}, v{O+r}, v{V_T+1}")
        for b in range(3):
            g.e(f"v_cvt_pk_bf16_f32 v{V_P+2*b}, v{O+4*b}, v{O+4*b+1}"); g.e(f"v_cvt_pk_bf16_f32 v{V_P+2*b+1}, v{O+4*b+2}, v{O+4*b+3}")
        g.smov(S_T0, t*32*1280)
        g.e(f"buffer_store_dwordx2 {v(V_P,2)}, v{V_OA}, s[{S_WS}:{S_WS+3}], s{S_T0} offen sc1")
        g.e(f"buffer_store_dwordx2 {v(V_P+2,2)}, v{V_OA}, s[{S_WS}:{S_WS+3}], s{S_T0} offen offset:16 sc1")
        g.e("s_mov_b32 exec_hi, 0")
        g.e(f"buffer_store_dwordx2 {v(V_P+4,2)}, v{V_OA}, s[{S_WS}:{S_WS+3}], s{S_T0} offen offset:32 sc1")
        g.e("s_mov_b32 exec_hi, -1")
    g.wait(vm=0)
    END = P+"_end"
    g.e(f"s_branch {END}")
    for (R, B, a_, m, O) in resc:
        g.lbl(R)
        g.e(f"v_mul_f32 v{V_T+2}, s{S_C}, v{a_}")
        g.e(f"v_max_f32 v{V_T+2}, v{V_T+2}, v{m}")
        g.e(f"v_sub_f32 v{V_T+3}, v{m}, v{V_T+2}")
        g.e(f"v_exp_f32 v{V_T+3}, v{V_T+3}")
        g.e(f"v_mov_b32 v{m}, v{V_T+2}")
        g.nop(8)
        for r in range(16): g.e(f"v_mul_f32 v{O+r}, v{O+r}, v{V_T+3}")
        g.e(f"s_branch {B}")
    g.lbl(END)
```

```python
from asmlib import *
from layout import *
S_WS, S_W1, S_X = 8, 12, 24
S_WAVE = 32
S_P, S_TT, S_TTEND = 30, 33, 34
S_T0, S_T1, S_T2 = 54, 55, 56
V_L16, V_XG, V_SQ, V_SV = 6, 7, 8, 9
V_XF = 32
V_ACC = 64
V_T = 168
def wr(idx, n=4, off=0): return a(4*idx + off, n)

def gen_aqkv(g, P):
    vD, vB0, vB1, vB2, vT0, vT1, vT2 = V_T, V_T+1, V_T+2, V_T+3, V_T+4, V_T+5, V_T+6
    g.e(f"v_lshlrev_b32 v{V_L16}, 4, v1")
    g.c("DMA source offsets: pos=lane&15, q = pos ^ f, f = 2*(g' + 4*(w>>1))")
    g.e(f"s_lshr_b32 s{S_T0}, s{S_WAVE}, 1"); g.e(f"s_lshl_b32 s{S_T0}, s{S_T0}, 3")
    g.e(f"v_lshlrev_b32 v{vT0}, 1, v3"); g.e(f"v_add_u32 v{vT0}, s{S_T0}, v{vT0}")
    g.e(f"v_xor_b32 v{vT0}, v{vT0}, v2")
    g.e(f"v_min_u32 v{vT0}, 14, v{vT0}")
    g.e(f"v_mul_u32_u24 v{vT1}, 13, v{vT0}"); g.e(f"v_lshrrev_b32 v{vT1}, 6, v{vT1}")
    g.e(f"v_mul_u32_u24 v{vT2}, 1200, v{vT1}")
    g.e(f"v_lshl_add_u32 v{vT2}, v{vT0}, 4, v{vT2}")
    g.e(f"s_lshl_b32 s{S_T0}, s{S_WAVE}, 2")
    g.e(f"v_add_u32 v{vT1}, s{S_T0}, v3")
    g.e(f"v_mul_u32_u24 v{vD}, 3840, v{vT1}")
    g.e(f"v_add_u32 v{vD}, v{vD}, v{vT2}")
    g.e(f"s_mul_i32 s{S_T0}, s{S_P}, 80")
    g.e(f"v_add_u32 v{vD}, s{S_T0}, v{vD}")
    g.c("tr-read bases. tile list per wave: (hh=w>>1, T=w&1, t=0), (.., t=1), (hh, T=2, t=w&1)")
    def base(dst, b0_setup):
        b0_setup()
        g.e(f"v_and_b32 v{vT0}, 3, v1")
        g.e(f"v_lshl_add_u32 v{vT0}, v{vT0}, 3, s{S_T0}")
        g.e(f"v_lshrrev_b32 v{vT1}, 4, v{vT0}")
        g.e(f"v_lshrrev_b32 v{vT2}, 2, v2")
        g.e(f"v_lshlrev_b32 v{vT2}, 1, v{vT2}")
        g.e(f"v_and_b32 v{dst}, 1, v3")
        g.e(f"v_lshl_add_u32 v{vT2}, v{dst}, 3, v{vT2}")
        g.e(f"v_xor_b32 v{vT1}, v{vT1}, v{vT2}")
        g.e(f"v_and_b32 v{vT0}, 15, v{vT0}")
        g.e(f"v_lshl_add_u32 v{vT0}, v{vT1}, 4, v{vT0}")
        g.e(f"v_lshrrev_b32 v{vT2}, 2, v2")
        g.e(f"v_lshl_add_u32 v{vT2}, v3, 3, v{vT2}")
        g.e(f"v_lshl_add_u32 v{dst}, v{vT2}, 8, v{vT0}")
    def hhT(extra_T=None, tconst=None):
        def f():
            g.e(f"s_lshr_b32 s{S_T0}, s{S_WAVE}, 1"); g.e(f"s_mul_i32 s{S_T0}, s{S_T0}, 40")
            g.e(f"s_and_b32 s{S_T1}, s{S_WAVE}, 1")
            if extra_T is None:
                g.e(f"s_mul_i32 s{S_T1}, s{S_T1}, 80"); g.e(f"s_add_u32 s{S_T0}, s{S_T0}, s{S_T1}")
                if tconst: g.e(f"s_add_u32 s{S_T0}, s{S_T0}, 32")
            else:
                g.e(f"s_lshl_b32 s{S_T1}, s{S_T1}, 5"); g.e(f"s_add_u32 s{S_T0}, s{S_T0}, s{S_T1}"); g.e(f"s_add_u32 s{S_T0}, s{S_T0}, 160")
        return f
    base(vB0, hhT(None, 0)); base(vB1, hhT(None, 1)); base(vB2, hhT(2))
    BUF = 40960
    def issue(c):
        for q in range(10):
            g.e(f"s_lshl_b32 s{S_T1}, s{S_WAVE}, 10")
            g.e(f"s_add_u32 m0, s{S_T1}, {hex(c*BUF + q*4096)}")
            g.smov(S_T2, (160*c + 16*q) * 3840)
            g.e(f"buffer_load_dwordx4 v{vD}, s[{S_W1}:{S_W1+3}], s{S_T2} offen lds")
    for c in range(4): issue(c)
    g.wait(vm=0); g.e("s_barrier")
    for c in range(4):
        for ti, vb in enumerate((vB0, vB1, vB2)):
            g.e(f"v_add_u32 v{vT0}, {hex(c*BUF)}, v{vb}")
            for kl in range(5):
                for half in range(2):
                    g.e(f"ds_read_b64_tr_b16 {wr(ti*20+5*c+kl, 2, 2*half)}, v{vT0} offset:{kl*8192 + half*1024}")
            g.wait(lgkm=0)
    g.e("s_barrier")
    g.c("X DMA + store offsets")
    g.e(f"v_mul_u32_u24 v{V_XG}, 1280, v2")
    g.e(f"v_lshl_add_u32 v{V_XG}, v3, 4, v{V_XG}")
    g.e(f"s_lshr_b32 s{S_T0}, s{S_WAVE}, 1"); g.e(f"s_mul_i32 s{S_T0}, s{S_T0}, {16*1280}")
    g.e(f"s_and_b32 s{S_T1}, s{S_WAVE}, 1"); g.e(f"s_mul_i32 s{S_T1}, s{S_T1}, 640")
    g.e(f"s_add_u32 s{S_T0}, s{S_T0}, s{S_T1}")
    g.e(f"v_add_u32 v{V_XG}, s{S_T0}, v{V_XG}")
    g.e(f"s_lshl_b32 s{S_T0}, s{S_P}, 1"); g.e(f"s_lshr_b32 s{S_T1}, s{S_WAVE}, 1"); g.e(f"s_add_u32 s{S_T0}, s{S_T0}, s{S_T1}")
    g.e(f"s_lshl_b32 s{S_T2}, s{S_T0}, 17")
    g.e(f"s_and_b32 s{S_T1}, s{S_WAVE}, 1"); g.e(f"s_mul_i32 s{S_T1}, s{S_T1}, {WS_KA - WS_QA}")
    g.e(f"s_add_u32 s{S_T1}, s{S_T1}, s{S_T2}"); g.e(f"s_add_u32 s{S_T1}, s{S_T1}, {hex(WS_QA)}")
    g.e(f"v_lshl_add_u32 v{V_SQ}, v2, 6, s{S_T1}")
    g.e(f"v_lshl_add_u32 v{V_SQ}, v3, 4, v{V_SQ}")
    g.e(f"s_and_b32 s{S_T1}, s{S_WAVE}, 1"); g.e(f"s_lshl_b32 s{S_T1}, s{S_T1}, 16")
    g.e(f"s_add_u32 s{S_T1}, s{S_T1}, s{S_T2}"); g.e(f"s_add_u32 s{S_T1}, s{S_T1}, {hex(WS_VT)}")
    g.e(f"v_lshl_add_u32 v{V_SV}, v2, 12, s{S_T1}")
    g.e(f"v_and_b32 v{vT0}, 1, v3"); g.e(f"v_lshl_add_u32 v{V_SV}, v{vT0}, 4, v{V_SV}")
    g.e(f"v_lshrrev_b32 v{vT0}, 1, v3"); g.e(f"v_lshl_add_u32 v{V_SV}, v{vT0}, 3, v{V_SV}")
    g.e("v_cmp_eq_u32 s[44:45], 0, v3")
    g.e("v_cmp_eq_u32 s[46:47], 4, v2")
    l = g.new(P+"m")
    g.e(f"s_bitcmp1_b32 s{S_WAVE}, 0"); g.e(f"s_cbranch_scc1 {l}")
    g.e("s_mov_b64 s[46:47], 0")
    g.lbl(l)
    g.e(f"v_mov_b32 v10, 0"); g.e(f"v_mov_b32 v11, 0x3f803f80")
    def dma(sblk, sbuf):
        g.e(f"s_mul_i32 s{S_T0}, s{sblk}, {32*1280}")
        g.e(f"s_mul_i32 s{S_T1}, s{S_WAVE}, 10240"); g.e(f"s_add_u32 s{S_T1}, s{S_T1}, s{sbuf}")
        for q in range(10):
            g.e(f"s_add_u32 m0, s{S_T1}, {q*1024}")
            g.e(f"s_add_u32 s{S_T2}, s{S_T0}, {q*64}")
            g.e(f"buffer_load_dwordx4 v{V_XG}, s[{S_X}:{S_X+3}], s{S_T2} offen lds")
    S_BUF, S_NXT = 36, 37
    g.smov(S_BUF, 0)
    dma(S_TT, S_BUF)
    g.wait(vm=0)
    LOOP = P+"_loop"; NOPF = P+"_nopf"
    g.lbl(LOOP)
    g.e("s_barrier")
    g.e(f"s_add_u32 s{S_NXT}, s{S_TT}, 1")
    g.e(f"s_xor_b32 s38, s{S_BUF}, 40960")
    g.e(f"s_cmp_ge_u32 s{S_NXT}, s{S_TTEND}"); g.e(f"s_cbranch_scc1 {NOPF}")
    dma(S_NXT, 38)
    g.lbl(NOPF)
    g.e(f"v_add_u32 v{V_T}, s{S_BUF}, v{V_L16}")
    seq = [(tt, kk) for kk in range(20) for tt in range(2)]
    NB = 8
    def rd(i):
        tt, kk = seq[i]
        g.e(f"ds_read_b128 {v(V_XF+4*(i%NB),4)}, v{V_T} offset:{(tt*20+kk)*1024}")
    for i in range(NB-1): rd(i)
    for i, (tt, kk) in enumerate(seq):
        if i + NB - 1 < len(seq):
            rd(i + NB - 1); g.wait(lgkm=NB-1)
        else:
            g.wait(lgkm=len(seq)-1-i)
        x = v(V_XF+4*(i%NB),4)
        for ti in range(3):
            d = v(V_ACC + 4*(tt*3 + ti), 4)
            c = '0' if kk == 0 else d
            if ti < 2: g.e(f"v_mfma_f32_16x16x32_bf16 {d}, {wr(ti*20+kk)}, {x}, {c}")
            else:      g.e(f"v_mfma_f32_16x16x32_bf16 {d}, {x}, {wr(ti*20+kk)}, {c}")
    g.nop(8)
    g.e(f"s_lshl_b32 s{S_T0}, s{S_TT}, 11")
    g.e(f"s_lshl_b32 s{S_T1}, s{S_TT}, 6")
    for tt in range(2):
        b0, b1, b2 = (V_ACC + 4*(tt*3+ti) for ti in range(3))
        o = V_XF + 8*tt
        g.e(f"v_cvt_pk_bf16_f32 v{o}, v{b0}, v{b0+1}"); g.e(f"v_cvt_pk_bf16_f32 v{o+1}, v{b0+2}, v{b0+3}")
        g.e(f"v_cvt_pk_bf16_f32 v{o+2}, v{b1}, v{b1+1}"); g.e(f"v_cvt_pk_bf16_f32 v{o+3}, v{b1+2}, v{b1+3}")
        g.e(f"v_cndmask_b32 v{o+2}, v10, v{o+2}, s[44:45]"); g.e(f"v_cndmask_b32 v{o+3}, v10, v{o+3}, s[44:45]")
        g.e(f"buffer_store_dwordx4 {v(o,4)}, v{V_SQ}, s[{S_WS}:{S_WS+3}], s{S_T0} offen offset:{1024*tt} sc1")
        g.e(f"v_cvt_pk_bf16_f32 v{o+4}, v{b2}, v{b2+1}"); g.e(f"v_cvt_pk_bf16_f32 v{o+5}, v{b2+2}, v{b2+3}")
        g.e(f"v_cndmask_b32 v{o+4}, v{o+4}, v11, s[46:47]"); g.e(f"v_cndmask_b32 v{o+5}, v{o+5}, v11, s[46:47]")
        g.e(f"buffer_store_dwordx2 {v(o+4,2)}, v{V_SV}, s[{S_WS}:{S_WS+3}], s{S_T1} offen offset:{32*tt} sc1")
    g.wait(vm=4)
    g.e(f"s_mov_b32 s{S_TT}, s{S_NXT}"); g.e(f"s_mov_b32 s{S_BUF}, s38")
    g.e(f"s_cmp_lt_u32 s{S_TT}, s{S_TTEND}"); g.e(f"s_cbranch_scc1 {LOOP}")
    g.wait(vm=0)
```

```python
class G:
    def __init__(s):
        s.L = []; s.nlab = 0
    def e(s, txt): s.L.append("    " + txt)
    def c(s, txt): s.L.append("    ; " + txt)
    def lbl(s, name): s.L.append(name + ":")
    def new(s, p="L"):
        s.nlab += 1; return f"{p}_{s.nlab}"
    def raw(s, txt): s.L.append(txt)
    def text(s): return "\n".join(s.L) + "\n"
    def nop(s, n):
        while n > 0:
            k = min(n, 16); s.e(f"s_nop {k-1}"); n -= k
    def wait(s, vm=None, lgkm=None):
        p = []
        if vm is not None: p.append(f"vmcnt({vm})")
        if lgkm is not None: p.append(f"lgkmcnt({lgkm})")
        s.e("s_waitcnt " + " ".join(p))
    def smov(s, d, imm): s.e(f"s_mov_b32 s{d}, {imm if isinstance(imm,str) else hex(imm & 0xffffffff)}")
    def srd(s, d, base, nbytes):
        s.e(f"s_mov_b32 s{d}, s{base}")
        s.e(f"s_and_b32 s{d+1}, s{base+1}, 0xffff")
        s.e(f"s_mov_b32 s{d+2}, {hex(nbytes)}")
        s.e(f"s_mov_b32 s{d+3}, 0x00020000")

def v(i, n=1): return f"v{i}" if n == 1 else f"v[{i}:{i+n-1}]"
def a(i, n=1): return f"a{i}" if n == 1 else f"a[{i}:{i+n-1}]"
def s(i, n=1): return f"s{i}" if n == 1 else f"s[{i}:{i+n-1}]"

KNAME = "gated_mix__mha_block__memory_aug_recurrent_mem_tr__prompt"
HEADER = open("cdna_kernels/" + KNAME + ".s.ref").read().split("; Override launch geometry")[0]

def wrap(kernels, body):
    out = HEADER
    for (label, grid, block, lds, *_r) in kernels:
        out += f"; @launch kernel={label} grid=({grid},1,1) block=({block},1,1) lds={lds}\n"
    out += '.amdgcn_target "amdgcn-amd-amdhsa--gfx950"\n.text\n'
    out += body
    out += '.section .rodata,"a"\n'
    seen = set()
    for (label, grid, block, lds, nv, ns, acc) in kernels:
        if label in seen: continue
        seen.add(label)
        out += f""".p2align 6
.amdhsa_kernel {label}
  .amdhsa_next_free_vgpr {nv}
  .amdhsa_next_free_sgpr {ns}
  .amdhsa_accum_offset {acc}
  .amdhsa_group_segment_fixed_size 0
  .amdhsa_kernarg_size 112
  .amdhsa_user_sgpr_count 2
  .amdhsa_user_sgpr_kernarg_segment_ptr 1
  .amdhsa_system_sgpr_workgroup_id_x 1
.end_amdhsa_kernel
"""
    return out

def kernel_head(g, label):
    g.raw(f".globl {label}\n.p2align 8\n.type {label},@function\n{label}:")
```

```python
from asmlib import *
from wload import *
from layout import *

S_WS, S_DBG, S_MEM0 = 8, 20, 24
S_X, S_J, S_HL, S_STEP = 28, 29, 31, 33
S_PYC, S_PYP, S_MG, S_MPUB, S_MPOI = 34, 35, 36, 37, 38
S_KF, S_BF, S_CP = 39, 40, 41
S_MLO8 = 44
S_SMV = 46
S_SMS = 48
S_MPM = 50
S_GLO2 = 52
S_T0, S_T1, S_T2 = 54, 55, 56
S_C = 57
S_SPIN = 58
S_ST = 60
V_MG, V_ML, V_L16, V_PA, V_PM, V_Y0, V_Y1, V_BF0, V_BF1, V_KF = 4,5,6,7,8,9,10,11,12,13
V_SPW, V_SPR, V_PST, V_RPW, V_RPR, V_MPL, V_MPR, V_YST, V_POI, V_NEG, V_KM = 14,15,16,17,18,19,20,21,22,24,25
V_MF = 32
V_ACC = 112
V_BFR = 128
V_KX = 160
V_T = 168
LDS_M, LDS_SP, LDS_RP = 0, 0x5000, 0x8000
NSTEP = 64

def poll_check(g, regs, again, sspin):
    t = V_T + 20
    first = True
    flat = [r + i for r in regs for i in range(4)]
    g.e(f"v_max3_u32 v{t}, v{flat[0]}, v{flat[1]}, v{flat[2]}")
    i = 3
    while i < len(flat):
        if i + 1 < len(flat):
            g.e(f"v_max3_u32 v{t}, v{t}, v{flat[i]}, v{flat[i+1]}"); i += 2
        else:
            g.e(f"v_max_u32 v{t}, v{t}, v{flat[i]}"); i += 1
    g.e(f"v_cmp_eq_u32 vcc, -1, v{t}")
    done = g.new("pd")
    g.e(f"s_cbranch_vccz {done}")
    g.e(f"s_sub_u32 s{sspin}, s{sspin}, 1")
    g.e(f"s_cbranch_scc0 {again}")
    g.e(f"s_mov_b32 s{sspin}, 0")
    g.lbl(done)

def stamp(g, i, on):
    if not on: return
    g.e(f"s_memtime s[{S_ST}:{S_ST+1}]"); g.wait(lgkm=0)
    g.e(f"s_sub_u32 s71, s{S_ST}, s70"); g.e(f"s_add_u32 s{62+i}, s{62+i}, s71"); g.e(f"s_mov_b32 s70, s{S_ST}")

def gen_chain(g, typ, fast, stamps=False):
    P = "C" + typ + ("f" if fast else "s")
    LOC = "" if fast else " sc1"
    isA = typ == 'A'
    gen_load_weights(g, typ, V_T, S_T0)
    g.c("---- per-lane constants")
    g.e(f"v_lshlrev_b32 v{V_L16}, 4, v1")
    g.e(f"v_cmp_gt_u32 s[{S_MLO8}:{S_MLO8+1}], 8, v2")
    g.e(f"v_cmp_gt_u32 s[{S_GLO2}:{S_GLO2+1}], 2, v3")
    g.e(f"v_and_b32 v{V_T}, 7, v2")
    g.e(f"s_mul_i32 s{S_T0}, s{S_X}, {GRP}")
    g.e(f"s_mul_i32 s{S_T1}, s{S_X}, 10240")
    g.e(f"s_sub_u32 s{S_T2}, {3*10240}, s{S_T1}")
    g.e(f"v_mov_b32 v{V_T+1}, s{S_T2}")
    g.e(f"v_mov_b32 v{V_T+2}, s{S_T1}")
    g.e(f"v_cndmask_b32 v{V_MG}, v{V_T+1}, v{V_T+2}, s[{S_MLO8}:{S_MLO8+1}]")
    g.e(f"s_mul_i32 s{S_T2}, s{S_WAVE}, {20*128}")
    g.e(f"v_lshl_add_u32 v{V_T+1}, v3, 7, s{S_T2}")
    g.e(f"v_lshl_add_u32 v{V_T+1}, v{V_T}, 4, v{V_T+1}")
    g.e(f"v_add_u32 v{V_MG}, v{V_MG}, v{V_T+1}")
    g.e(f"s_mul_i32 s{S_T2}, s{S_WAVE}, 5120")
    g.e(f"v_add_u32 v{V_ML}, s{S_T2}, v{V_L16}")
    g.e(f"s_lshl_b32 s{S_T2}, s{S_WAVE}, 11"); g.e(f"s_add_u32 s{S_T2}, s{S_T2}, s{S_T0}")
    g.e(f"v_lshl_add_u32 v{V_T+1}, v2, 6, s{S_T2}")
    g.e(f"v_lshl_add_u32 v{V_PA}, v3, 4, v{V_T+1}")
    g.e(f"s_lshl_b32 s{S_T2}, s{S_WAVE}, 9"); g.e(f"s_add_u32 s{S_T2}, s{S_T2}, s{S_T0}"); g.e(f"s_add_u32 s{S_T2}, s{S_T2}, {PMM}")
    g.e(f"v_lshl_add_u32 v{V_T+1}, v3, 7, s{S_T2}")
    g.e(f"v_lshl_add_u32 v{V_PM}, v{V_T}, 4, v{V_T+1}")
    g.e(f"s_lshr_b32 s{S_T1}, s{S_J}, 1"); g.e(f"s_mul_i32 s{S_T1}, s{S_T1}, 40")
    if not isA: g.e(f"s_add_u32 s{S_T1}, s{S_T1}, 24")
    g.e(f"s_mov_b32 s59, s{S_T1}")
    g.e(f"s_mul_i32 s{S_T2}, s{S_WAVE}, {4*10240}"); g.e(f"s_add_u32 s{S_T2}, s{S_T2}, s{S_T0}"); g.e(f"s_add_u32 s{S_T2}, s{S_T2}, {YOFF}")
    g.e(f"v_mul_u32_u24 v{V_T+1}, 10240, v3")
    g.e(f"v_add_u32 v{V_T+1}, s{S_T2}, v{V_T+1}")
    g.e(f"v_add_u32 v{V_T+2}, s59, v2")
    g.e(f"v_lshl_add_u32 v{V_Y0}, v{V_T+2}, 4, v{V_T+1}")
    g.e(f"v_add_u32 v{V_T+3}, s59, v{V_T}")
    g.e(f"v_add_u32 v{V_T+3}, 16, v{V_T+3}")
    g.e(f"v_lshl_add_u32 v{V_Y1}, v{V_T+3}, 4, v{V_T+1}")
    g.e(f"s_lshl_b32 s{S_T2}, s{S_X}, 4"); g.e(f"s_lshl_b32 s{S_ST}, s{S_WAVE}, 2"); g.e(f"s_add_u32 s{S_T2}, s{S_T2}, s{S_ST}")
    g.e(f"s_mul_i32 s{S_T2}, s{S_T2}, 40960")
    for dst, col in ((V_BF0, V_T+2), (V_BF1, V_T+3)):
        g.e(f"v_lshrrev_b32 v{V_T+4}, 4, v{col}")
        g.e(f"v_lshlrev_b32 v{V_T+4}, 10, v{V_T+4}")
        g.e(f"v_and_b32 v{V_T+5}, 15, v{col}")
        g.e(f"v_lshl_add_u32 v{V_T+5}, v3, 4, v{V_T+5}")
        g.e(f"v_lshl_add_u32 v{V_T+4}, v{V_T+5}, 4, v{V_T+4}")
        g.e(f"v_add_u32 v{dst}, s{S_T2}, v{V_T+4}")
    g.e(f"s_lshl_b32 s{S_T2}, s{S_H}, 13"); g.e(f"s_lshl_b32 s{S_ST}, s{S_WAVE}, 11"); g.e(f"s_add_u32 s{S_T2}, s{S_T2}, s{S_ST}")
    g.e(f"v_add_u32 v{V_KF}, s{S_T2}, v{V_L16}")
    g.e(f"s_lshl_b32 s{S_T2}, s{S_H}, 12"); g.e(f"s_lshl_b32 s{S_ST}, s{S_WAVE}, 10"); g.e(f"s_add_u32 s{S_T2}, s{S_T2}, s{S_ST}")
    g.e(f"v_add_u32 v{V_KM}, s{S_T2}, v{V_L16}")
    g.e(f"s_mul_i32 s{S_T2}, s{S_WAVE}, 3072"); g.e(f"s_add_u32 s{S_T2}, s{S_T2}, {LDS_SP}")
    g.e(f"v_add_u32 v{V_SPW}, s{S_T2}, v{V_L16}")
    g.e(f"s_lshl_b32 s{S_T2}, s{S_WAVE}, 11"); g.e(f"s_add_u32 s{S_T2}, s{S_T2}, {LDS_RP}")
    g.e(f"v_add_u32 v{V_RPW}, s{S_T2}, v{V_L16}")
    g.e(f"s_and_b32 s{S_T2}, s{S_WAVE}, 1"); g.e(f"s_lshl_b32 s{S_T2}, s{S_T2}, 10"); g.e(f"s_add_u32 s{S_T2}, s{S_T2}, {LDS_RP}")
    g.e(f"v_add_u32 v{V_RPR}, s{S_T2}, v{V_L16}")
    g.e(f"s_and_b32 s{S_T2}, s{S_WAVE}, 1"); g.e(f"s_lshl_b32 s{S_T2}, s{S_T2}, 1")
    g.e(f"s_lshr_b32 s{S_ST}, s59, 3"); g.e(f"s_add_u32 s{S_T2}, s{S_T2}, s{S_ST}")
    g.e(f"v_lshrrev_b32 v{V_T+1}, 1, v3")
    g.e(f"v_add_u32 v{V_T+1}, s{S_T2}, v{V_T+1}")
    g.e(f"v_lshlrev_b32 v{V_T+1}, 7, v{V_T+1}")
    g.e(f"v_lshl_add_u32 v{V_T+1}, v2, 4, v{V_T+1}")
    g.e(f"v_and_b32 v{V_T+2}, 1, v3")
    g.e(f"v_lshl_add_u32 v{V_T+1}, v{V_T+2}, 3, v{V_T+1}")
    g.e(f"s_mul_i32 s{S_T2}, s{S_X}, 10240")
    g.e(f"v_add_u32 v{V_MPL}, s{S_T2}, v{V_T+1}")
    g.e(f"v_add_u32 v{V_MPR}, 20480, v{V_MPL}")
    g.e(f"s_mov_b64 s[{S_MPM}:{S_MPM+1}], 0")
    l1 = g.new(P+"m"); l2 = g.new(P+"m")
    g.e(f"s_cmp_eq_u32 s{S_WAVE}, 0"); g.e(f"s_cbranch_scc0 {l1}")
    g.e(f"s_mov_b64 s[{S_MPM}:{S_MPM+1}], s[{S_MLO8}:{S_MLO8+1}]")
    g.lbl(l1)
    if isA:
        g.e(f"s_cmp_eq_u32 s{S_WAVE}, 1"); g.e(f"s_cbranch_scc0 {l2}")
        g.e(f"s_and_b64 s[{S_MPM}:{S_MPM+1}], s[{S_MLO8}:{S_MLO8+1}], s[{S_GLO2}:{S_GLO2+1}]")
        g.lbl(l2)
    g.e(f"v_mov_b32 v{V_POI}, -1"); g.e(f"v_mov_b32 v{V_POI+1}, -1")
    g.e(f"v_mov_b32 v{V_NEG}, 0xff61b1e6")
    g.smov(S_C, 0x3e0293ee)
    if isA:
        g.e(f"v_lshrrev_b32 v{V_T+1}, 2, v2")
        g.e(f"v_and_b32 v{V_T+2}, 3, v2")
        g.e(f"v_and_b32 v{V_T+3}, 1, v3")
        g.e(f"s_lshl_b32 s{S_T2}, s{S_WAVE}, 1")
        g.e(f"v_add_u32 v{V_T+3}, s{S_T2}, v{V_T+3}")
        g.e(f"v_min_u32 v{V_T+4}, 2, v{V_T+1}")
        g.e(f"v_lshlrev_b32 v{V_T+4}, 10, v{V_T+4}")
        g.e(f"v_lshl_add_u32 v{V_T+5}, v{V_T+2}, 4, v{V_T+3}")
        g.e(f"v_lshl_add_u32 v{V_T+4}, v{V_T+5}, 4, v{V_T+4}")
        g.e(f"v_add_u32 v{V_SPR}, {LDS_SP}, v{V_T+4}")
        g.e(f"v_cmp_gt_u32 s[{S_SMV}:{S_SMV+1}], 2, v2")
        g.e(f"v_subrev_u32 v{V_T+4}, 4, v2")
        g.e(f"v_cmp_gt_u32 vcc, 8, v{V_T+4}")
        g.e(f"s_or_b64 s[{S_SMV}:{S_SMV+1}], s[{S_SMV}:{S_SMV+1}], vcc")
        g.e(f"s_and_b64 s[{S_SMS}:{S_SMS+1}], s[{S_SMV}:{S_SMV+1}], s[{S_GLO2}:{S_GLO2+1}]")
        g.e(f"s_lshl_b32 s{S_T2}, s{S_HL}, 7"); g.e(f"s_add_u32 s{S_T2}, s{S_T2}, {PMM}")
        g.e(f"v_lshl_add_u32 v{V_T+4}, v{V_T+3}, 4, s{S_T2}")
        g.e(f"v_lshl_add_u32 v{V_T+4}, v{V_T+2}, 3, v{V_T+4}")
        g.e(f"s_lshl_b32 s{S_T2}, s{S_HL}, 9"); g.e(f"s_sub_u32 s{S_T2}, s{S_T2}, 8")
        g.e(f"v_lshl_add_u32 v{V_T+5}, v{V_T+3}, 6, s{S_T2}")
        g.e(f"v_lshl_add_u32 v{V_T+5}, v{V_T+2}, 4, v{V_T+5}")
        g.e(f"v_lshl_add_u32 v{V_T+5}, v{V_T+1}, 3, v{V_T+5}")
        g.e(f"v_cmp_eq_u32 vcc, 0, v{V_T+1}")
        g.e("s_nop 1")
        g.e(f"v_cndmask_b32 v{V_PST}, v{V_T+5}, v{V_T+4}, vcc")
        g.e(f"v_add_u32 v{V_PST}, s{S_T0}, v{V_PST}")
    else:
        g.e(f"s_mul_i32 s{S_T2}, s{S_HL}, 10240"); g.e(f"s_add_u32 s{S_T2}, s{S_T2}, s{S_T0}"); g.e(f"s_add_u32 s{S_T2}, s{S_T2}, {YOFF}")
        g.e(f"s_lshl_b32 s{S_ST}, s{S_WAVE}, 8"); g.e(f"s_add_u32 s{S_T2}, s{S_T2}, s{S_ST}")
        g.e(f"v_lshrrev_b32 v{V_T+1}, 1, v3")
        g.e(f"v_lshl_add_u32 v{V_T+1}, v{V_T+1}, 10, s{S_T2}")
        g.e(f"v_lshl_add_u32 v{V_T+1}, v2, 4, v{V_T+1}")
        g.e(f"v_and_b32 v{V_T+2}, 1, v3")
        g.e(f"v_lshl_add_u32 v{V_YST}, v{V_T+2}, 3, v{V_T+1}")
        g.e(f"s_mul_i32 s{S_T2}, s{S_H}, 10240"); g.e(f"s_add_u32 s{S_T2}, s{S_T2}, s{S_ST}")
        g.e(f"v_lshrrev_b32 v{V_T+1}, 1, v3")
        g.e(f"v_lshl_add_u32 v{V_T+1}, v{V_T+1}, 10, s{S_T2}")
        g.e(f"v_lshl_add_u32 v{V_T+1}, v2, 4, v{V_T+1}")
        g.e(f"v_lshl_add_u32 v{V_KM}, v{V_T+2}, 3, v{V_T+1}")

    def poison_py(soff):
        if isA:
            g.e(f"s_mov_b64 exec, s[{S_SMS}:{S_SMS+1}]")
            g.e(f"buffer_store_dwordx2 v[{V_POI}:{V_POI+1}], v{V_PST}, s[{S_WS}:{S_WS+3}], s{soff} offen{LOC}")
            g.e("s_mov_b64 exec, -1")
        else:
            for u in range(5):
                g.e(f"s_add_u32 s{S_T2}, s{soff}, {u*2048}")
                g.e(f"buffer_store_dwordx2 v[{V_POI}:{V_POI+1}], v{V_YST}, s[{S_WS}:{S_WS+3}], s{S_T2} offen{LOC}")
    def poison_mp(soff):
        sk = g.new(P+"pm")
        g.e(f"s_mov_b64 exec, s[{S_MPM}:{S_MPM+1}]")
        g.e(f"s_cbranch_execz {sk}")
        g.e(f"buffer_store_dwordx2 v[{V_POI}:{V_POI+1}], v{V_MPL}, s[{S_WS}:{S_WS+3}], s{soff} offen{LOC}")
        g.e(f"buffer_store_dwordx2 v[{V_POI}:{V_POI+1}], v{V_MPR}, s[{S_WS}:{S_WS+3}], s{soff} offen sc1")
        g.lbl(sk)
        g.e("s_mov_b64 exec, -1")
    g.c("---- initial poison of own output areas in all slots")
    for sl in range(2):
        g.smov(S_T1, WS_RING + sl*PY_SLOT); poison_py(S_T1)
    for sl in range(4):
        g.smov(S_T1, WS_RINGM + sl*M_SLOT); poison_mp(S_T1)
    g.wait(vm=0)
    g.e("s_barrier")
    g.c("---- chain startup barrier (64 WGs)")
    sk = g.new(P+"sb")
    g.e(f"s_cmp_eq_u32 s{S_WAVE}, 0"); g.e(f"s_cbranch_scc0 {sk}")
    g.e(f"v_mov_b32 v{V_T}, 1"); g.e(f"v_mov_b32 v{V_T+1}, {DBG_CHAIN_UP*4}")
    g.e("s_mov_b64 exec, 1")
    g.e(f"buffer_atomic_add v{V_T}, v{V_T+1}, s[{S_DBG}:{S_DBG+3}], 0 offen")
    g.e("s_mov_b64 exec, -1")
    g.smov(S_SPIN, 1 << 20)
    lp = g.new(P+"sbl"); dn = g.new(P+"sbd")
    g.lbl(lp)
    g.e(f"buffer_load_dword v{V_T+2}, v{V_T+1}, s[{S_DBG}:{S_DBG+3}], 0 offen sc1")
    g.wait(vm=0)
    g.e(f"v_cmp_gt_u32 vcc, 64, v{V_T+2}")
    g.e(f"s_cbranch_vccz {dn}")
    g.e(f"s_sub_u32 s{S_SPIN}, s{S_SPIN}, 1"); g.e(f"s_cbranch_scc0 {lp}")
    g.lbl(dn)
    g.lbl(sk)
    g.c("---- M(0) from mem0 into LDS")
    g.e(f"v_mul_u32_u24 v{V_T}, 1280, v2")
    g.e(f"v_lshl_add_u32 v{V_T}, v3, 4, v{V_T}")
    g.e(f"s_mul_i32 s{S_T2}, s{S_WAVE}, 320")
    g.e(f"v_add_u32 v{V_T}, s{S_T2}, v{V_T}")
    g.e(f"v_mov_b32 v{V_T+1}, 0x10000000")
    g.e(f"v_cndmask_b32 v{V_T}, v{V_T+1}, v{V_T}, s[{S_MLO8}:{S_MLO8+1}]")
    for k in range(5):
        g.e(f"buffer_load_dwordx4 v[{V_MF+4*k}:{V_MF+4*k+3}], v{V_T}, s[{S_MEM0}:{S_MEM0+3}], 0 offen offset:{64*k}")
    g.wait(vm=0)
    for k in range(5):
        g.e(f"ds_write_b128 v{V_ML}, v[{V_MF+4*k}:{V_MF+4*k+3}] offset:{1024*k}")
    g.wait(lgkm=0)
    g.e("s_barrier")
    g.smov(S_STEP, 0)
    g.smov(S_SPIN, 1 << 22)
    if stamps:
        for i in range(8): g.smov(62+i, 0)
        g.e(f"s_memtime s[{S_ST}:{S_ST+1}]"); g.wait(lgkm=0); g.e(f"s_mov_b32 s70, s{S_ST}")
    LOOP = P + "_loop"; LAST = P + "_last"; END = P + "_end"
    g.lbl(LOOP)
    g.c("---- step setup")
    g.e(f"s_and_b32 s{S_T0}, s{S_STEP}, 1")
    g.e(f"s_mul_i32 s{S_PYC}, s{S_T0}, {PY_SLOT}"); g.e(f"s_add_u32 s{S_PYC}, s{S_PYC}, {hex(WS_RING)}")
    g.e(f"s_xor_b32 s{S_T0}, s{S_T0}, 1")
    g.e(f"s_mul_i32 s{S_PYP}, s{S_T0}, {PY_SLOT}"); g.e(f"s_add_u32 s{S_PYP}, s{S_PYP}, {hex(WS_RING)}")
    g.e(f"s_add_u32 s{S_T0}, s{S_STEP}, 1"); g.e(f"s_and_b32 s{S_T0}, s{S_T0}, 3")
    g.e(f"s_mul_i32 s{S_MPUB}, s{S_T0}, {M_SLOT}"); g.e(f"s_add_u32 s{S_MPUB}, s{S_MPUB}, {hex(WS_RINGM)}")
    g.e(f"s_add_u32 s{S_T0}, s{S_STEP}, 3"); g.e(f"s_and_b32 s{S_T0}, s{S_T0}, 3")
    g.e(f"s_mul_i32 s{S_MPOI}, s{S_T0}, {M_SLOT}"); g.e(f"s_add_u32 s{S_MPOI}, s{S_MPOI}, {hex(WS_RINGM)}")
    g.e(f"s_lshl_b32 s{S_KF}, s{S_STEP}, 18"); g.e(f"s_add_u32 s{S_KF}, s{S_KF}, {hex(WS_KF)}")
    g.e(f"s_mul_i32 s{S_BF}, s{S_STEP}, {32*40960}"); g.e(f"s_add_u32 s{S_BF}, s{S_BF}, {hex(WS_BF)}")
    g.c("---- read M frags from LDS")
    for kk in range(20):
        g.e(f"ds_read_b128 v[{V_MF+4*kk}:{V_MF+4*kk+3}], v{V_L16} offset:{LDS_M + 1024*kk}")
    g.c("---- prefetch + poison")
    if isA:
        for tt in range(2):
            g.e(f"buffer_load_dwordx4 v[{V_KX+4*tt}:{V_KX+4*tt+3}], v{V_KF}, s[{S_WS}:{S_WS+3}], s{S_KF} offen offset:{1024*tt} sc1")
    for hh in range(4):
        g.e(f"s_add_u32 s{S_T2}, s{S_BF}, {hh*40960}")
        g.e(f"buffer_load_dwordx4 v[{V_BFR+8*hh}:{V_BFR+8*hh+3}], v{V_BF0}, s[{S_WS}:{S_WS+3}], s{S_T2} offen sc1")
        if isA:
            g.e(f"buffer_load_dwordx4 v[{V_BFR+8*hh+4}:{V_BFR+8*hh+7}], v{V_BF1}, s[{S_WS}:{S_WS+3}], s{S_T2} offen sc1")
    poison_py(S_PYP)
    poison_mp(S_MPOI)
    g.c("---- stage 1")
    ntile = 4 if isA else 2
    for kk in range(20):
        g.wait(lgkm=min(15, 19-kk))
        for t in range(ntile):
            idx = t*20 + kk
            c = "0" if kk == 0 else v(V_ACC+4*t, 4)
            g.e(f"v_mfma_f32_16x16x32_bf16 {v(V_ACC+4*t,4)}, {wreg(idx)}, {v(V_MF+4*kk,4)}, {c}")
    g.nop(8)
    for r in range(4*ntile):
        g.e(f"v_add_f32_dpp v{V_ACC+r}, v{V_ACC+r}, v{V_ACC+r} row_ror:8 row_mask:0xf bank_mask:0xf")
    FQ, FK = V_ACC+16-16+0, None
    fr = V_T + 12
    for f in range(ntile//2):
        for t in range(2):
            b = V_ACC + 4*(2*f+t)
            g.e(f"v_cvt_pk_bf16_f32 v{fr+4*f+2*t}, v{b}, v{b+1}")
            g.e(f"v_cvt_pk_bf16_f32 v{fr+4*f+2*t+1}, v{b+2}, v{b+3}")
    stamp(g, 0, stamps)
    if isA:
        fq, fk = fr, fr+4
        g.wait(vm=0)
        g.e("s_nop 1")
        g.e(f"v_mfma_f32_16x16x32_bf16 {v(V_T,4)}, {v(fk,4)}, {v(fq,4)}, 0")
        g.e(f"v_mfma_f32_16x16x32_bf16 {v(V_T+4,4)}, {v(V_KX,4)}, {v(fq,4)}, 0")
        g.e(f"v_mfma_f32_16x16x32_bf16 {v(V_T+8,4)}, {v(V_KX+4,4)}, {v(fq,4)}, 0")
        g.nop(6)
        g.e(f"ds_write_b128 v{V_SPW}, {v(V_T,4)}")
        g.e(f"ds_write_b128 v{V_SPW}, {v(V_T+4,4)} offset:1024")
        g.nop(1)
        g.e(f"ds_write_b128 v{V_SPW}, {v(V_T+8,4)} offset:2048")
        for r in range(4): g.e(f"v_mov_b32 v{V_KX+r}, v{fk+r}")
        g.wait(lgkm=0)
        g.e("s_barrier")
        R = V_MF
        for wp in range(4):
            g.e(f"ds_read_b128 {v(R+4*wp,4)}, v{V_SPR} offset:{3072*wp}")
        g.wait(lgkm=0)
        X = V_T
        for r in range(4):
            g.e(f"v_add_f32 v{X+r}, v{R+r}, v{R+4+r}")
            g.e(f"v_add_f32 v{X+4+r}, v{R+8+r}, v{R+12+r}")
        for r in range(4):
            g.e(f"v_add_f32 v{X+r}, v{X+r}, v{X+4+r}")
        for r in range(4):
            g.e(f"v_cndmask_b32 v{X+r}, v{V_NEG}, v{X+r}, s[{S_SMV}:{S_SMV+1}]")
        m = X+4
        g.e(f"v_max3_f32 v{m}, v{X}, v{X+1}, v{X+2}")
        g.e(f"v_max_f32 v{m}, v{m}, v{X+3}")
        for rot in (8,4,2,1):
            g.e("s_nop 1")
            g.e(f"v_max_f32_dpp v{m}, v{m}, v{m} row_ror:{rot} row_mask:0xf bank_mask:0xf")
        g.e(f"v_mul_f32 v{m}, s{S_C}, v{m}")
        for r in range(4):
            g.e(f"v_fma_f32 v{X+r}, v{X+r}, s{S_C}, -v{m}")
        for r in range(4):
            g.e(f"v_exp_f32 v{X+r}, v{X+r}")
        g.e("s_nop 0")
        l = X+5
        g.e(f"v_add_f32 v{l}, v{X}, v{X+1}")
        g.e(f"v_add_f32 v{l+1}, v{X+2}, v{X+3}")
        g.e(f"v_add_f32 v{l}, v{l}, v{l+1}")
        for rot in (8,4,2,1):
            g.e("s_nop 1")
            g.e(f"v_add_f32_dpp v{l}, v{l}, v{l} row_ror:{rot} row_mask:0xf bank_mask:0xf")
        g.e(f"v_rcp_f32 v{l}, v{l}")
        g.e("s_nop 0")
        for r in range(4):
            g.e(f"v_mul_f32 v{X+r}, v{X+r}, v{l}")
        g.e(f"v_cvt_pk_bf16_f32 v{X+6}, v{X}, v{X+1}")
        g.e(f"v_cvt_pk_bf16_f32 v{X+7}, v{X+2}, v{X+3}")
        g.e(f"s_mov_b64 exec, s[{S_SMS}:{S_SMS+1}]")
        g.e(f"buffer_store_dwordx2 v[{X+6}:{X+7}], v{V_PST}, s[{S_WS}:{S_WS+3}], s{S_PYC} offen{LOC}")
        g.e("s_mov_b64 exec, -1")
    else:
        fv = fr
        g.e(f"ds_write_b128 v{V_SPW}, {v(fv,4)}")
        g.wait(lgkm=0)
        g.e("s_barrier")
        R = V_MF
        for wp in range(4):
            g.e(f"ds_read_b128 {v(R+4*wp,4)}, v{V_L16} offset:{LDS_SP + 3072*wp}")
        YA = V_MF + 16
        for wp in range(4):
            g.wait(lgkm=3-wp)
            for ctl in range(10):
                c = "0" if wp == 0 else v(YA+4*ctl, 4)
                g.e(f"v_mfma_f32_16x16x32_bf16 {v(YA+4*ctl,4)}, {v(R+4*wp,4)}, {wreg(40+ctl*4+wp)}, {c}")
        g.nop(8)
        YP = V_T
        tmp = V_ACC
        for u in range(5):
            b0, b1 = YA+4*(2*u), YA+4*(2*u+1)
            g.e(f"v_cvt_pk_bf16_f32 v{tmp}, v{b0}, v{b0+1}")
            g.e(f"v_cvt_pk_bf16_f32 v{tmp+1}, v{b0+2}, v{b0+3}")
            g.e(f"v_cvt_pk_bf16_f32 v{tmp+2}, v{b1}, v{b1+1}")
            g.e(f"v_cvt_pk_bf16_f32 v{tmp+3}, v{b1+2}, v{b1+3}")
            g.e(f"v_cndmask_b32 v{YP+2*u}, v{tmp+2}, v{tmp}, s[{S_GLO2}:{S_GLO2+1}]")
            g.e(f"v_cndmask_b32 v{YP+2*u+1}, v{tmp+3}, v{tmp+1}, s[{S_GLO2}:{S_GLO2+1}]")
            if u == 0: g.wait(vm=0)
            g.e(f"s_add_u32 s{S_T2}, s{S_PYC}, {u*2048}")
            g.e(f"buffer_store_dwordx2 v[{YP+2*u}:{YP+2*u+1}], v{V_YST}, s[{S_WS}:{S_WS+3}], s{S_T2} offen{LOC}")
    stamp(g, 1, stamps)
    def copies():
        if isA:
            g.e(f"s_lshl_b32 s{S_CP}, s{S_STEP}, 17"); g.e(f"s_add_u32 s{S_CP}, s{S_CP}, {hex(WS_KM)}")
            g.e(f"buffer_store_dwordx4 {v(V_KX,4)}, v{V_KM}, s[{S_WS}:{S_WS+3}], s{S_CP} offen sc1")
        else:
            g.e(f"s_mul_i32 s{S_CP}, s{S_STEP}, {32*10240}"); g.e(f"s_add_u32 s{S_CP}, s{S_CP}, {hex(WS_YT)}")
            for u in range(5):
                g.e(f"s_add_u32 s{S_T2}, s{S_CP}, {u*2048}")
                g.e(f"buffer_store_dwordx2 v[{V_T+2*u}:{V_T+2*u+1}], v{V_KM}, s[{S_WS}:{S_WS+3}], s{S_T2} offen sc1")
    g.e(f"s_cmp_eq_u32 s{S_STEP}, {NSTEP-1}"); g.e(f"s_cbranch_scc1 {LAST}")
    g.c("---- hop 1 gather")
    H = V_MF + 64
    H = V_MF + 56
    hl = g.new(P+"h1")
    g.lbl(hl)
    if stamps: g.e("s_add_u32 s68, s68, 1")
    g.e(f"buffer_load_dwordx4 {v(H,4)}, v{V_PA}, s[{S_WS}:{S_WS+3}], s{S_PYC} offen sc1")
    g.e(f"buffer_load_dwordx4 {v(H+4,4)}, v{V_PA}, s[{S_WS}:{S_WS+3}], s{S_PYC} offen offset:1024 sc1")
    g.e(f"buffer_load_dwordx4 {v(H+8,4)}, v{V_PM}, s[{S_WS}:{S_WS+3}], s{S_PYC} offen sc1")
    g.e(f"buffer_load_dwordx4 {v(H+12,4)}, v{V_Y0}, s[{S_WS}:{S_WS+3}], s{S_PYC} offen sc1")
    regs = [H, H+4, H+8, H+12]
    if isA:
        g.e(f"buffer_load_dwordx4 {v(H+16,4)}, v{V_Y1}, s[{S_WS}:{S_WS+3}], s{S_PYC} offen sc1")
        regs.append(H+16)
    g.wait(vm=0)
    poll_check(g, regs, hl, S_SPIN)
    stamp(g, 2, stamps)
    g.c("---- stage 2")
    ntau = 2 if isA else 1
    D1, D2 = V_ACC, V_ACC+8
    for tau in range(ntau):
        d1, d2 = v(D1+4*tau,4), v(D2+4*tau,4)
        g.e(f"v_mfma_f32_16x16x32_bf16 {d1}, {v(H+12+4*tau,4)}, {v(H+8,4)}, 0")
        g.e(f"v_mfma_f32_16x16x32_bf16 {d2}, {v(V_BFR+8*1+4*tau,4)}, {v(H,4)}, 0")
        g.e(f"v_mfma_f32_16x16x32_bf16 {d1}, {v(V_BFR+8*0+4*tau,4)}, {v(H,4)}, {d1}")
        g.e(f"v_mfma_f32_16x16x32_bf16 {d2}, {v(V_BFR+8*3+4*tau,4)}, {v(H+4,4)}, {d2}")
        g.e(f"v_mfma_f32_16x16x32_bf16 {d1}, {v(V_BFR+8*2+4*tau,4)}, {v(H+4,4)}, {d1}")
    g.nop(8)
    for tau in range(ntau):
        for r in range(4):
            g.e(f"v_add_f32_dpp v{D1+4*tau+r}, v{D2+4*tau+r}, v{D1+4*tau+r} row_ror:8 row_mask:0xf bank_mask:0xf")
    for tau in range(ntau):
        g.e(f"ds_write_b128 v{V_RPW}, {v(D1+4*tau,4)} offset:{1024*tau}")
    g.wait(lgkm=0)
    g.e("s_barrier")
    sk = g.new(P+"mp")
    g.e(f"s_mov_b64 exec, s[{S_MPM}:{S_MPM+1}]")
    g.e(f"s_cbranch_execz {sk}")
    R = V_MF
    for wp in range(4):
        g.e(f"ds_read_b128 {v(R+4*wp,4)}, v{V_RPR} offset:{2048*wp}")
    g.wait(lgkm=0)
    for r in range(4):
        g.e(f"v_add_f32 v{R+r}, v{R+r}, v{R+4+r}")
        g.e(f"v_add_f32 v{R+8+r}, v{R+8+r}, v{R+12+r}")
    for r in range(4):
        g.e(f"v_add_f32 v{R+r}, v{R+r}, v{R+8+r}")
    g.e(f"v_cvt_pk_bf16_f32 v{R+16}, v{R}, v{R+1}")
    g.e(f"v_cvt_pk_bf16_f32 v{R+17}, v{R+2}, v{R+3}")
    g.e(f"buffer_store_dwordx2 v[{R+16}:{R+17}], v{V_MPR}, s[{S_WS}:{S_WS+3}], s{S_MPUB} offen sc1")
    g.e(f"buffer_store_dwordx2 v[{R+16}:{R+17}], v{V_MPL}, s[{S_WS}:{S_WS+3}], s{S_MPUB} offen{LOC}")
    g.lbl(sk)
    g.e("s_mov_b64 exec, -1")
    stamp(g, 3, stamps)
    copies()
    g.c("---- gather M(s+1)")
    hm = g.new(P+"h2")
    M5 = V_MF + 20
    g.lbl(hm)
    if stamps: g.e("s_add_u32 s69, s69, 1")
    for k in range(5):
        g.e(f"buffer_load_dwordx4 {v(M5+4*k,4)}, v{V_MG}, s[{S_WS}:{S_WS+3}], s{S_MPUB} offen offset:{512*k} sc1")
    g.wait(vm=0)
    poll_check(g, [M5+4*k for k in range(5)], hm, S_SPIN)
    for k in range(5):
        g.e(f"ds_write_b128 v{V_ML}, {v(M5+4*k,4)} offset:{1024*k}")
    g.wait(lgkm=0)
    g.e("s_barrier")
    stamp(g, 4, stamps)
    g.e(f"s_add_u32 s{S_STEP}, s{S_STEP}, 1")
    g.e(f"s_branch {LOOP}")
    g.lbl(LAST)
    copies()
    if stamps:
        g.e(f"s_lshl_b32 s{S_T0}, s{S_X}, 5"); g.e(f"s_add_u32 s{S_T0}, s{S_T0}, s{S_J}"); g.e(f"s_lshl_b32 s{S_T0}, s{S_T0}, 8")
        g.e(f"s_lshl_b32 s{S_T1}, s{S_WAVE}, 6"); g.e(f"s_add_u32 s{S_T0}, s{S_T0}, s{S_T1}"); g.e(f"s_add_u32 s{S_T0}, s{S_T0}, {hex(WS_STAMP)}")
        g.e(f"v_mov_b32 v{V_MF+8}, 0")
        for i in range(8):
            g.e(f"v_mov_b32 v{V_MF+i}, s{62+i}")
        g.e("s_mov_b64 exec, 1")
        g.e(f"buffer_store_dwordx4 {v(V_MF,4)}, v{V_MF+8}, s[{S_WS}:{S_WS+3}], s{S_T0} offen")
        g.e(f"buffer_store_dwordx4 {v(V_MF+4,4)}, v{V_MF+8}, s[{S_WS}:{S_WS+3}], s{S_T0} offen offset:16")
        g.e("s_mov_b64 exec, -1")
    g.wait(vm=0)
    g.e("s_endpgm")
```

```python
from asmlib import *
from layout import *
S_WS = 8
S_WAVE = 32
S_T0, S_T1, S_T2 = 54, 55, 56

def gen_wot(g, P, S_WO, S_SG):
    vD, vB0, vB1, vT0, vT1 = 10, 11, 12, 13, 14
    g.e(f"s_lshr_b32 s{S_T0}, s{S_WAVE}, 1"); g.e(f"s_lshl_b32 s{S_T0}, s{S_T0}, 3")
    g.e(f"v_lshlrev_b32 v{vT0}, 1, v3"); g.e(f"v_add_u32 v{vT0}, s{S_T0}, v{vT0}")
    g.e(f"v_xor_b32 v{vT0}, v{vT0}, v2"); g.e(f"v_lshlrev_b32 v{vT0}, 4, v{vT0}")
    g.e(f"s_lshl_b32 s{S_T0}, s{S_WAVE}, 2"); g.e(f"v_add_u32 v{vT1}, s{S_T0}, v3")
    g.e(f"v_mul_u32_u24 v{vD}, 1280, v{vT1}"); g.e(f"v_add_u32 v{vD}, v{vD}, v{vT0}")
    for dst, add in ((vB0, 0), (vB1, 1)):
        g.e(f"s_lshl_b32 s{S_T0}, s{S_WAVE}, 2"); g.e(f"s_add_u32 s{S_T0}, s{S_T0}, {2*add}")
        g.e(f"v_bfe_u32 v{vT0}, v1, 1, 1"); g.e(f"v_add_u32 v{vT0}, s{S_T0}, v{vT0}")
        g.e(f"v_lshrrev_b32 v{vT1}, 2, v2"); g.e(f"v_lshlrev_b32 v{vT1}, 1, v{vT1}")
        g.e(f"v_and_b32 v{dst}, 1, v3"); g.e(f"v_lshl_add_u32 v{vT1}, v{dst}, 3, v{vT1}")
        g.e(f"v_xor_b32 v{vT0}, v{vT0}, v{vT1}"); g.e(f"v_lshlrev_b32 v{vT0}, 4, v{vT0}")
        g.e(f"v_and_b32 v{vT1}, 1, v1"); g.e(f"v_lshl_add_u32 v{vT0}, v{vT1}, 3, v{vT0}")
        g.e(f"v_lshrrev_b32 v{vT1}, 2, v2"); g.e(f"v_lshl_add_u32 v{vT1}, v3, 3, v{vT1}")
        g.e(f"v_lshl_add_u32 v{dst}, v{vT1}, 8, v{vT0}")
    for c in range(4):
        for q in range(10):
            g.e(f"s_lshl_b32 s{S_T1}, s{S_WAVE}, 10"); g.e(f"s_add_u32 m0, s{S_T1}, {hex(c*40960 + q*4096)}")
            g.e(f"s_lshl_b32 s{S_T2}, s{S_SG}, 8"); g.e(f"s_add_u32 s{S_T2}, s{S_T2}, {hex((160*c+16*q)*1280)}")
            g.e(f"buffer_load_dwordx4 v{vD}, s[{S_WO}:{S_WO+3}], s{S_T2} offen lds")
    g.wait(vm=0); g.e("s_barrier")
    g.e(f"v_lshlrev_b32 v15, 4, v1")
    g.e(f"s_lshl_b32 s{S_T0}, s{S_SG}, 3"); g.e(f"s_lshl_b32 s{S_T1}, s{S_WAVE}, 1"); g.e(f"s_add_u32 s{S_T0}, s{S_T0}, s{S_T1}")
    g.e(f"s_mul_i32 s{S_T0}, s{S_T0}, 20480"); g.e(f"s_add_u32 s{S_T0}, s{S_T0}, {hex(WS_WOT)}")
    for t, vb in enumerate((vB0, vB1)):
        for c in range(4):
            g.e(f"v_add_u32 v{vT0}, {hex(c*40960)}, v{vb}")
            for kl in range(5):
                for half in range(2):
                    g.e(f"ds_read_b64_tr_b16 {v(32+4*kl+2*half,2)}, v{vT0} offset:{kl*8192+half*1024}")
            g.wait(lgkm=0)
            for kl in range(5):
                g.e(f"s_add_u32 s{S_T1}, s{S_T0}, {t*20480 + (5*c+kl)*1024}")
                g.e(f"buffer_store_dwordx4 {v(32+4*kl,4)}, v15, s[{S_WS}:{S_WS+3}], s{S_T1} offen sc1")
            g.wait(vm=0)
    g.e("s_barrier")

S_PS, S_PH = 30, 31
def gen_ptok_setup(g):
    g.e("v_lshlrev_b32 v10, 2, v3")
    for r in range(4):
        g.e(f"v_add_u32 v11, {r}, v10")
        g.e(f"v_cmp_le_u32 s[{60+2*r}:{61+2*r}], v11, v2")
    g.e("v_cmp_gt_u32 s[68:69], 2, v3")

def gen_ptok(g, P, wait_km=None):
    V_L16, V_NEG = 6, 7
    V_Q, V_K, V_KM = 32, 64, 96
    V_S = 112
    V_T = 140
    gen_ptok_setup(g)
    g.e(f"v_lshlrev_b32 v{V_L16}, 4, v1")
    g.e(f"v_mov_b32 v{V_NEG}, 0xff61b1e6")
    g.smov(57, 0x3e0293ee)
    g.e("v_lshlrev_b32 v8, 9, v2"); g.e("v_lshl_add_u32 v8, v3, 3, v8")
    first = True
    for hh in range(2):
        g.e(f"s_lshl_b32 s58, s{S_PH}, 3"); g.e(f"s_lshl_b32 s{S_T0}, s{S_WAVE}, 1"); g.e(f"s_add_u32 s58, s58, s{S_T0}")
        if hh: g.e("s_add_u32 s58, s58, 1")
        g.e(f"s_lshl_b32 s{S_T0}, s{S_PS}, 5"); g.e(f"s_add_u32 s{S_T0}, s{S_T0}, s58")
        g.e(f"s_lshl_b32 s{S_T1}, s{S_T0}, 13")
        g.e(f"s_add_u32 s{S_T2}, s{S_T1}, {hex(WS_QF)}")
        for wp in range(4):
            g.e(f"s_add_u32 s59, s{S_T2}, {wp*2048}")
            for tq in range(2):
                g.e(f"buffer_load_dwordx4 {v(V_Q+4*(wp*2+tq),4)}, v{V_L16}, s[{S_WS}:{S_WS+3}], s59 offen offset:{1024*tq} sc1")
        g.e(f"s_add_u32 s{S_T2}, s{S_T1}, {hex(WS_KF)}")
        for wp in range(4):
            g.e(f"s_add_u32 s59, s{S_T2}, {wp*2048}")
            for tt in range(2):
                g.e(f"buffer_load_dwordx4 {v(V_K+4*(wp*2+tt),4)}, v{V_L16}, s[{S_WS}:{S_WS+3}], s59 offen offset:{1024*tt} sc1")
        if first and wait_km: wait_km(g)
        first = False
        g.e(f"s_lshl_b32 s{S_T2}, s{S_T0}, 12"); g.e(f"s_add_u32 s{S_T2}, s{S_T2}, {hex(WS_KM)}")
        for wp in range(4):
            g.e(f"buffer_load_dwordx4 {v(V_KM+4*wp,4)}, v{V_L16}, s[{S_WS}:{S_WS+3}], s{S_T2} offen offset:{1024*wp} sc1")
        g.wait(vm=4)
        for wp in range(4):
            for tq in range(2):
                for tt in range(tq+1):
                    d = v(V_S+12*tq+4+4*tt, 4)
                    g.e(f"v_mfma_f32_16x16x32_bf16 {d}, {v(V_K+4*(wp*2+tt),4)}, {v(V_Q+4*(wp*2+tq),4)}, {'0' if wp==0 else d}")
        g.wait(vm=0)
        for wp in range(4):
            for tq in range(2):
                d = v(V_S+12*tq, 4)
                g.e(f"v_mfma_f32_16x16x32_bf16 {d}, {v(V_KM+4*wp,4)}, {v(V_Q+4*(wp*2+tq),4)}, {'0' if wp==0 else d}")
        g.nop(8)
        for tq in range(2):
            S = V_S + 12*tq
            M, X0, X1 = S, S+4, S+8
            diag = X0 if tq == 0 else X1
            for r in range(4):
                g.e(f"v_cndmask_b32 v{M+r}, v{V_NEG}, v{M+r}, s[68:69]")
                g.e(f"v_cndmask_b32 v{diag+r}, v{V_NEG}, v{diag+r}, s[{60+2*r}:{61+2*r}]")
            vals = [M+r for r in range(4)] + [X0+r for r in range(4)] + ([X1+r for r in range(4)] if tq == 1 else [])
            m, m2 = V_T, V_T+1
            g.e(f"v_max3_f32 v{m}, v{vals[0]}, v{vals[1]}, v{vals[2]}")
            i = 3
            while i < len(vals):
                if i+1 < len(vals): g.e(f"v_max3_f32 v{m}, v{m}, v{vals[i]}, v{vals[i+1]}"); i += 2
                else: g.e(f"v_max_f32 v{m}, v{m}, v{vals[i]}"); i += 1
            def xred(reg, tmp, op):
                g.e(f"v_mov_b32 v{tmp}, v{reg}"); g.e("s_nop 1")
                g.e(f"v_permlane32_swap_b32 v{reg}, v{tmp}"); g.e("s_nop 0")
                g.e(f"{op} v{reg}, v{reg}, v{tmp}")
                g.e(f"v_mov_b32 v{tmp}, v{reg}"); g.e("s_nop 1")
                g.e(f"v_permlane16_swap_b32 v{reg}, v{tmp}"); g.e("s_nop 0")
                g.e(f"{op} v{reg}, v{reg}, v{tmp}")
            xred(m, m2, "v_max_f32")
            g.e(f"v_mul_f32 v{m}, s57, v{m}")
            for x in vals: g.e(f"v_fma_f32 v{x}, v{x}, s57, -v{m}")
            for x in vals: g.e(f"v_exp_f32 v{x}, v{x}")
            g.e("s_nop 0")
            l = V_T+2
            g.e(f"v_add_f32 v{l}, v{vals[0]}, v{vals[1]}")
            for x in vals[2:]: g.e(f"v_add_f32 v{l}, v{l}, v{x}")
            xred(l, m2, "v_add_f32")
            g.e(f"v_rcp_f32 v{l}, v{l}"); g.e("s_nop 0")
            for x in vals: g.e(f"v_mul_f32 v{x}, v{x}, v{l}")
            o = V_T+4
            g.e(f"v_cvt_pk_bf16_f32 v{o}, v{X0}, v{X0+1}"); g.e(f"v_cvt_pk_bf16_f32 v{o+1}, v{X0+2}, v{X0+3}")
            if tq == 1:
                g.e(f"v_cvt_pk_bf16_f32 v{o+2}, v{X1}, v{X1+1}"); g.e(f"v_cvt_pk_bf16_f32 v{o+3}, v{X1+2}, v{X1+3}")
            else:
                g.e(f"v_mov_b32 v{o+2}, 0"); g.e(f"v_mov_b32 v{o+3}, 0")
            g.e(f"v_cvt_pk_bf16_f32 v{o+4}, v{M}, v{M+1}"); g.e(f"v_cvt_pk_bf16_f32 v{o+5}, v{M+2}, v{M+3}")
            g.e(f"s_lshl_b32 s{S_T2}, s{S_T0}, 11"); g.e(f"s_add_u32 s{S_T2}, s{S_T2}, {hex(WS_PTX + tq*1024)}")
            g.e(f"buffer_store_dwordx4 {v(o,4)}, v{V_L16}, s[{S_WS}:{S_WS+3}], s{S_T2} offen sc1")
            g.e(f"s_lshl_b32 s{S_T2}, s{S_PS}, 14"); g.e(f"s_lshl_b32 s59, s58, 4"); g.e(f"s_add_u32 s{S_T2}, s{S_T2}, s59")
            g.e(f"s_add_u32 s{S_T2}, s{S_T2}, {hex(WS_PTM + tq*8192)}")
            g.e("s_mov_b64 exec, s[68:69]")
            g.e(f"buffer_store_dwordx2 {v(o+4,2)}, v8, s[{S_WS}:{S_WS+3}], s{S_T2} offen sc1")
            g.e("s_mov_b64 exec, -1")
            g.e("s_nop 1")
    g.wait(vm=0)

S_GS, S_GC = 30, 31
def gen_gout(g, P, S_X, S_GW, S_OUT, wait_a=None, wait_p=None):
    V_L16, V_XO, V_PM, V_YO, V_GWO, V_OO = 6, 7, 8, 9, 10, 11
    ACC_B, ACC_A, ACC_G = 32, 72, 112
    V_B = 128
    g.e(f"v_lshlrev_b32 v{V_L16}, 4, v1")
    g.e(f"v_mul_u32_u24 v{V_XO}, 1280, v2"); g.e(f"v_lshl_add_u32 v{V_XO}, v3, 4, v{V_XO}")
    g.e(f"v_lshlrev_b32 v{V_GWO}, 4, v3")
    g.e(f"v_lshlrev_b32 v{V_PM}, 9, v2"); g.e(f"v_lshl_add_u32 v{V_PM}, v3, 4, v{V_PM}")
    g.e(f"v_mul_u32_u24 v{V_YO}, 10240, v3"); g.e(f"v_lshl_add_u32 v{V_YO}, v2, 4, v{V_YO}")
    if wait_a: wait_a(g)
    g.c("A part: kk = 5w..5w+4")
    g.e(f"s_mul_i32 s58, s{S_GS}, {32*1280}"); g.e(f"s_mul_i32 s{S_T0}, s{S_WAVE}, 320"); g.e(f"s_add_u32 s58, s58, s{S_T0}")
    g.e(f"s_mul_i32 s59, s{S_GC}, {5*20480}"); g.e(f"s_mul_i32 s{S_T0}, s{S_WAVE}, 5120"); g.e(f"s_add_u32 s59, s59, s{S_T0}"); g.e(f"s_add_u32 s59, s59, {hex(WS_WOT)}")
    g.e(f"s_mul_i32 s60, s{S_WAVE}, 320")
    for kl in range(5):
        B = V_B + 40*(kl % 2)
        for tq in range(2):
            g.e(f"s_add_u32 s{S_T0}, s58, {tq*16*1280 + kl*64}")
            g.e(f"s_add_u32 s{S_T1}, s{S_T0}, {hex(WS_OA)}")
            g.e(f"buffer_load_dwordx4 {v(B+4*tq,4)}, v{V_XO}, s[{S_WS}:{S_WS+3}], s{S_T1} offen sc1")
            g.e(f"buffer_load_dwordx4 {v(B+8+4*tq,4)}, v{V_XO}, s[{S_X}:{S_X+3}], s{S_T0} offen")
        g.e(f"buffer_load_dwordx4 {v(B+16,4)}, v{V_GWO}, s[{S_GW}:{S_GW+3}], s60 offen offset:{kl*64}")
        for ctl in range(5):
            g.e(f"s_add_u32 s{S_T0}, s59, {ctl*20480 + kl*1024}")
            g.e(f"buffer_load_dwordx4 {v(B+20+4*ctl,4)}, v{V_L16}, s[{S_WS}:{S_WS+3}], s{S_T0} offen sc1")
        g.wait(vm=0)
        for tq in range(2):
            d = v(ACC_G+4*tq,4)
            g.e(f"v_mfma_f32_16x16x32_bf16 {d}, {v(B+16,4)}, {v(B+8+4*tq,4)}, {'0' if kl==0 else d}")
            for ctl in range(5):
                d = v(ACC_A+4*(ctl*2+tq),4)
                g.e(f"v_mfma_f32_16x16x32_bf16 {d}, {v(B+20+4*ctl,4)}, {v(B+4*tq,4)}, {'0' if kl==0 else d}")
    if wait_p: wait_p(g)
    g.c("B part: heads 8w..8w+7")
    g.e(f"s_lshl_b32 s58, s{S_GS}, 14"); g.e(f"s_lshl_b32 s{S_T0}, s{S_WAVE}, 7"); g.e(f"s_add_u32 s58, s58, s{S_T0}"); g.e(f"s_add_u32 s58, s58, {hex(WS_PTM)}")
    g.e(f"s_mul_i32 s59, s{S_GS}, {32*10240}"); g.e(f"s_mul_i32 s{S_T0}, s{S_WAVE}, {8*10240}"); g.e(f"s_add_u32 s59, s59, s{S_T0}")
    g.e(f"s_mul_i32 s{S_T0}, s{S_GC}, {5*256}"); g.e(f"s_add_u32 s59, s59, s{S_T0}"); g.e(f"s_add_u32 s59, s59, {hex(WS_YT)}")
    for u in range(2):
        B = V_B + 28*u
        for tq in range(2):
            g.e(f"s_add_u32 s{S_T0}, s58, {tq*8192 + u*64}")
            g.e(f"buffer_load_dwordx4 {v(B+4*tq,4)}, v{V_PM}, s[{S_WS}:{S_WS+3}], s{S_T0} offen sc1")
        g.e(f"s_add_u32 s{S_T0}, s59, {u*4*10240}")
        for ctl in range(5):
            g.e(f"buffer_load_dwordx4 {v(B+8+4*ctl,4)}, v{V_YO}, s[{S_WS}:{S_WS+3}], s{S_T0} offen offset:{ctl*256} sc1")
    g.wait(vm=0)
    for u in range(2):
        B = V_B + 28*u
        for ctl in range(5):
            for tq in range(2):
                d = v(ACC_B+4*(ctl*2+tq),4)
                g.e(f"v_mfma_f32_16x16x32_bf16 {d}, {v(B+8+4*ctl,4)}, {v(B+4*tq,4)}, {'0' if u==0 else d}")
    g.e(f"s_lshl_b32 s58, s{S_GS}, 5"); g.e(f"s_lshl_b32 s{S_T0}, s{S_WAVE}, 3"); g.e(f"s_add_u32 s58, s58, s{S_T0}")
    g.e(f"s_mul_i32 s59, s58, 40960"); g.e(f"s_mul_i32 s{S_T0}, s{S_GC}, 5120"); g.e(f"s_add_u32 s59, s59, s{S_T0}"); g.e(f"s_add_u32 s59, s59, {hex(WS_BF)}")
    g.e(f"s_lshl_b32 s58, s58, 11"); g.e(f"s_add_u32 s58, s58, {hex(WS_PTX)}")
    def ld(hh):
        B = V_B + 28*(hh % 4)
        g.e(f"s_add_u32 s{S_T0}, s58, {hh*2048}")
        for tq in range(2):
            g.e(f"buffer_load_dwordx4 {v(B+4*tq,4)}, v{V_L16}, s[{S_WS}:{S_WS+3}], s{S_T0} offen offset:{1024*tq} sc1")
        for ctl in range(5):
            g.e(f"s_add_u32 s{S_T0}, s59, {hh*40960 + ctl*1024}")
            g.e(f"buffer_load_dwordx4 {v(B+8+4*ctl,4)}, v{V_L16}, s[{S_WS}:{S_WS+3}], s{S_T0} offen sc1")
    for hh in range(3): ld(hh)
    for hh in range(8):
        if hh + 3 < 8:
            ld(hh+3); g.wait(vm=21)
        else:
            g.wait(vm=7*(7-hh))
        B = V_B + 28*(hh % 4)
        for ctl in range(5):
            for tq in range(2):
                d = v(ACC_B+4*(ctl*2+tq),4)
                g.e(f"v_mfma_f32_16x16x32_bf16 {d}, {v(B+8+4*ctl,4)}, {v(B+4*tq,4)}, {d}")
    g.nop(8)
    g.c("cross-wave reduce: LDS [w][tile 22][lane*16]; tiles 0..9 b, 10..19 a, 20..21 gate")
    g.e(f"s_mul_i32 s{S_T0}, s{S_WAVE}, {22*1024}"); g.e(f"v_add_u32 v12, s{S_T0}, v{V_L16}")
    for t in range(10):
        g.e(f"ds_write_b128 v12, {v(ACC_B+4*t,4)} offset:{t*1024}")
        g.e(f"ds_write_b128 v12, {v(ACC_A+4*t,4)} offset:{(10+t)*1024}")
    for t in range(2): g.e(f"ds_write_b128 v12, {v(ACC_G+4*t,4)} offset:{(20+t)*1024}")
    g.wait(lgkm=0); g.e("s_barrier")
    g.e(f"v_mul_u32_u24 v{V_OO}, 1280, v2"); g.e(f"v_lshl_add_u32 v{V_OO}, v3, 3, v{V_OO}")
    for rnd in range(3):
        sk = g.new(P+"sk")
        g.e(f"s_add_u32 s58, s{S_WAVE}, {4*rnd}")
        if rnd == 2:
            g.e("s_cmp_ge_u32 s58, 10"); g.e(f"s_cbranch_scc1 {sk}")
        g.e("s_lshl_b32 s59, s58, 10"); g.e(f"v_add_u32 v12, s59, v{V_L16}")
        g.e("s_and_b32 s60, s58, 1"); g.e("s_lshl_b32 s61, s60, 10"); g.e(f"v_add_u32 v13, s61, v{V_L16}")
        R = V_B
        for wp in range(4):
            g.e(f"v_add_u32 v14, {wp*22*1024}, v12")
            g.e(f"ds_read_b128 {v(R+4*wp,4)}, v14")
            g.e(f"ds_read_b128 {v(R+16+4*wp,4)}, v14 offset:{10*1024}")
            g.e(f"v_add_u32 v15, {wp*22*1024 + 20*1024}, v13")
            g.e(f"ds_read_b32 v{R+32+wp}, v15")
        g.wait(lgkm=0)
        for base in (R, R+16):
            for r in range(4):
                g.e(f"v_add_f32 v{base+r}, v{base+r}, v{base+4+r}"); g.e(f"v_add_f32 v{base+8+r}, v{base+8+r}, v{base+12+r}")
            for r in range(4): g.e(f"v_add_f32 v{base+r}, v{base+r}, v{base+8+r}")
        G_ = R+32
        g.e(f"v_add_f32 v{G_}, v{G_}, v{G_+1}"); g.e(f"v_add_f32 v{G_+2}, v{G_+2}, v{G_+3}"); g.e(f"v_add_f32 v{G_}, v{G_}, v{G_+2}")
        g.e(f"v_mul_f32 v{G_}, 0xbfb8aa3b, v{G_}")
        g.e(f"v_exp_f32 v{G_}, v{G_}"); g.e("s_nop 0")
        g.e(f"v_add_f32 v{G_}, 1.0, v{G_}")
        g.e(f"v_rcp_f32 v{G_}, v{G_}"); g.e("s_nop 0")
        for r in range(4):
            g.e(f"v_sub_f32 v{R+16+r}, v{R+16+r}, v{R+r}")
            g.e(f"v_fma_f32 v{R+r}, v{R+16+r}, v{G_}, v{R+r}")
        g.e(f"v_cvt_pk_bf16_f32 v{R+4}, v{R}, v{R+1}"); g.e(f"v_cvt_pk_bf16_f32 v{R+5}, v{R+2}, v{R+3}")
        g.e(f"s_lshl_b32 s61, s{S_GS}, 1"); g.e("s_add_u32 s61, s61, s60"); g.e(f"s_mul_i32 s61, s61, {16*1280}")
        g.e(f"s_mul_i32 s59, s{S_GC}, 5"); g.e("s_lshr_b32 s60, s58, 1"); g.e("s_add_u32 s59, s59, s60"); g.e("s_lshl_b32 s59, s59, 5")
        g.e("s_add_u32 s61, s61, s59")
        g.e(f"buffer_store_dwordx2 {v(R+4,2)}, v{V_OO}, s[{S_OUT}:{S_OUT+3}], s61 offen")
        g.lbl(sk)
    g.wait(vm=0)
    g.e("s_barrier")
```

```python
WS_KF   = 0x0000000
WS_QF   = 0x1000000
WS_BF   = 0x2000000
WS_YT   = 0x7000000
WS_KM   = 0x8400000
WS_RING = 0x8C00000
PMX, PMM, YOFF = 0, 0x2000, 0x2800
GRP = 0x2A800
PY_SLOT = 2*GRP
WS_RINGM = WS_RING + 2*PY_SLOT
M_SLOT = 4*10240
MOFF = 2*GRP
SLOT = MOFF + 4*10240
assert WS_RING + 4*SLOT <= 0x9000000
WS_STAMP = 0x9000000
WS_A = 0x9100000
DBG_XCC = 0
DBG_WORK = 8
DBG_CHAIN_UP = 9
WS_QA = WS_A
WS_KA = WS_A + 0x400000
WS_VT = WS_A + 0x800000
WS_OA = WS_A + 0xC00000
WS_WOT = WS_A + 0xF00000
WS_END = WS_A + 0x1000000
WS_PTX = WS_END
WS_PTM = WS_PTX + 0x400000
WS_FLAGS = WS_PTM + 0x100000
WS_TOTAL = WS_FLAGS + 0x100000
assert WS_TOTAL <= 268435456
```

```python
from asmlib import *
from wload import *
from layout import *

S_WS = 8
S_X = 24
S_SEG, S_SEGEND, S_SEGSTEP = 33, 34, 35
S_T0, S_T1, S_T2 = 54, 55, 56
V_L16, V_XG, V_ST = 6, 7, 8
V_XF = 32
V_ACC = 64
V_T = 168
LDS_X0, LDS_X1, LDS_V = 0, 40960, 81920

def gen_producer(g, typ, P, signal=None, pre=None):
    isA = typ == 'A'
    gen_load_weights(g, typ, V_T, S_T0)
    g.e(f"v_lshlrev_b32 v{V_L16}, 4, v1")
    g.e(f"v_mul_u32_u24 v{V_XG}, 1280, v2")
    g.e(f"v_lshl_add_u32 v{V_XG}, v3, 4, v{V_XG}")
    g.e(f"s_lshr_b32 s{S_T0}, s{S_WAVE}, 1"); g.e(f"s_mul_i32 s{S_T0}, s{S_T0}, {16*1280}")
    g.e(f"s_and_b32 s{S_T1}, s{S_WAVE}, 1"); g.e(f"s_mul_i32 s{S_T1}, s{S_T1}, 640")
    g.e(f"s_add_u32 s{S_T0}, s{S_T0}, s{S_T1}")
    g.e(f"v_add_u32 v{V_XG}, s{S_T0}, v{V_XG}")
    if isA:
        g.e(f"s_lshl_b32 s{S_T0}, s{S_H}, 13"); g.e(f"s_lshl_b32 s{S_T1}, s{S_WAVE}, 11"); g.e(f"s_add_u32 s{S_T0}, s{S_T0}, s{S_T1}")
    else:
        g.e(f"s_mul_i32 s{S_T0}, s{S_H}, 40960"); g.e(f"s_lshl_b32 s{S_T1}, s{S_WAVE}, 10"); g.e(f"s_add_u32 s{S_T0}, s{S_T0}, s{S_T1}")
    g.e(f"v_add_u32 v{V_ST}, s{S_T0}, v{V_L16}")
    def dma(sseg, buf_sgpr):
        g.e(f"s_mul_i32 s{S_T0}, s{sseg}, {32*1280}")
        g.e(f"s_mul_i32 s{S_T1}, s{S_WAVE}, 10240"); g.e(f"s_add_u32 s{S_T1}, s{S_T1}, s{buf_sgpr}")
        for q in range(10):
            g.e(f"s_add_u32 m0, s{S_T1}, {q*1024}")
            g.e(f"s_add_u32 s{S_T2}, s{S_T0}, {q*64}")
            g.e(f"buffer_load_dwordx4 v{V_XG}, s[{S_X}:{S_X+3}], s{S_T2} offen lds")
    S_BUF, S_NXT = 36, 37
    if pre: pre(g)
    g.smov(S_BUF, LDS_X0)
    dma(S_SEG, S_BUF)
    LOOP = P + "_loop"; DONE = P + "_done"; NOPF = P + "_nopf"
    g.wait(vm=0)
    g.lbl(LOOP)
    g.e("s_barrier")
    g.e(f"s_add_u32 s{S_NXT}, s{S_SEG}, s{S_SEGSTEP}")
    g.e(f"s_xor_b32 s38, s{S_BUF}, {LDS_X0 ^ LDS_X1}")
    g.e(f"s_cmp_ge_u32 s{S_NXT}, 64"); g.e(f"s_cbranch_scc1 {NOPF}")
    dma(S_NXT, 38)
    g.lbl(NOPF)
    g.e(f"v_add_u32 v{V_T}, s{S_BUF}, v{V_L16}")
    ntile = 4 if isA else 2
    seq = [(tt, kk) for kk in range(20) for tt in range(2)]
    NB = 8
    def rd(i):
        tt, kk = seq[i]
        g.e(f"ds_read_b128 {v(V_XF+4*(i%NB),4)}, v{V_T} offset:{(tt*20+kk)*1024}")
    for i in range(NB-1): rd(i)
    for i, (tt, kk) in enumerate(seq):
        if i + NB - 1 < len(seq):
            rd(i + NB - 1); g.wait(lgkm=NB-1)
        else:
            g.wait(lgkm=len(seq)-1-i)
        for t in range(ntile):
            d = v(V_ACC + 4*(tt*ntile + t), 4)
            g.e(f"v_mfma_f32_16x16x32_bf16 {d}, {wreg(t*20+kk)}, {v(V_XF+4*(i%NB),4)}, {'0' if kk==0 else d}")
    g.nop(8)
    if isA:
        g.e(f"s_lshl_b32 s{S_T0}, s{S_SEG}, 18")
        for T in range(2):
            g.e(f"s_add_u32 s{S_T1}, s{S_T0}, {hex(WS_QF if T == 0 else WS_KF)}")
            for tt in range(2):
                o = V_XF + 8*T + 4*tt
                for t in range(2):
                    b = V_ACC + 4*(tt*4 + 2*T + t)
                    g.e(f"v_cvt_pk_bf16_f32 v{o+2*t}, v{b}, v{b+1}")
                    g.e(f"v_cvt_pk_bf16_f32 v{o+2*t+1}, v{b+2}, v{b+3}")
                g.e(f"buffer_store_dwordx4 {v(o,4)}, v{V_ST}, s[{S_WS}:{S_WS+3}], s{S_T1} offen offset:{1024*tt} sc1")
    else:
        g.e(f"s_lshl_b32 s{S_T0}, s{S_WAVE}, 11"); g.e(f"s_add_u32 s{S_T0}, s{S_T0}, {LDS_V}")
        g.e(f"v_add_u32 v{V_T+1}, s{S_T0}, v{V_L16}")
        for tt in range(2):
            o = V_XF + 4*tt
            for t in range(2):
                b = V_ACC + 4*(tt*2 + t)
                g.e(f"v_cvt_pk_bf16_f32 v{o+2*t}, v{b}, v{b+1}")
                g.e(f"v_cvt_pk_bf16_f32 v{o+2*t+1}, v{b+2}, v{b+3}")
            g.e(f"ds_write_b128 v{V_T+1}, {v(o,4)} offset:{1024*tt}")
        g.wait(lgkm=0)
        g.e("s_barrier")
        g.e(f"v_add_u32 v{V_T+2}, {LDS_V}, v{V_L16}")
        for wp in range(4):
            for tt in range(2):
                g.e(f"ds_read_b128 {v(V_XF+4*(wp*2+tt),4)}, v{V_T+2} offset:{wp*2048 + tt*1024}")
        for wp in range(4):
            g.wait(lgkm=6-2*wp)
            for ctl in range(10):
                for tt in range(2):
                    d = v(V_ACC + 4*(ctl*2+tt), 4)
                    g.e(f"v_mfma_f32_16x16x32_bf16 {d}, {v(V_XF+4*(wp*2+tt),4)}, {wreg(40+ctl*4+wp)}, {'0' if wp==0 else d}")
        g.nop(8)
        g.e(f"s_mul_i32 s{S_T0}, s{S_SEG}, {32*40960}"); g.e(f"s_add_u32 s{S_T0}, s{S_T0}, {hex(WS_BF)}")
        for ctl in range(10):
            o = V_XF + 4*(ctl % 8)
            if ctl == 8: g.nop(2)
            for tt in range(2):
                b = V_ACC + 4*(ctl*2+tt)
                g.e(f"v_cvt_pk_bf16_f32 v{o+2*tt}, v{b}, v{b+1}")
                g.e(f"v_cvt_pk_bf16_f32 v{o+2*tt+1}, v{b+2}, v{b+3}")
            g.e(f"s_add_u32 s{S_T1}, s{S_T0}, {ctl*4096}")
            g.e(f"buffer_store_dwordx4 {v(o,4)}, v{V_ST}, s[{S_WS}:{S_WS+3}], s{S_T1} offen sc1")
    if signal: signal(g)
    g.wait(vm=(4 if isA else 10))
    g.e(f"s_mov_b32 s{S_SEG}, s{S_NXT}")
    g.e(f"s_mov_b32 s{S_BUF}, s38")
    g.e(f"s_cmp_lt_u32 s{S_SEG}, 64"); g.e(f"s_cbranch_scc1 {LOOP}")
    g.wait(vm=0)
```

```python
from asmlib import *

def wreg(idx):
    return a(4*idx, 4) if idx < 64 else v(192 + 4*(idx-64), 4)
def wreg2(idx, half):
    return a(4*idx + 2*half, 2) if idx < 64 else v(192 + 4*(idx-64) + 2*half, 2)

S_W1, S_W2 = 12, 16
S_WAVE = 32
S_H = 30

def gen_load_weights(g, typ, vt, st):
    vDMA_A, vDMA_O, vB0, vB1, vT0, vT1 = vt, vt+1, vt+2, vt+3, vt+4, vt+5
    sCol, sOff, sT = st, st+1, st+2
    g.c("---- weight load: per-lane DMA source offsets")
    g.e(f"s_lshr_b32 s{sT}, s{S_WAVE}, 1")
    g.e(f"s_lshl_b32 s{sT}, s{sT}, 3")
    g.e(f"v_lshlrev_b32 v{vT0}, 1, v3")
    g.e(f"v_add_u32 v{vT0}, s{sT}, v{vT0}")
    g.e(f"v_xor_b32 v{vT0}, v{vT0}, v2")
    g.e(f"v_lshlrev_b32 v{vT0}, 4, v{vT0}")
    g.e(f"s_lshl_b32 s{sT}, s{S_WAVE}, 2")
    g.e(f"v_add_u32 v{vT1}, s{sT}, v3")
    g.e(f"v_lshlrev_b32 v{vDMA_A}, 13, v{vT1}")
    g.e(f"v_add_u32 v{vDMA_A}, v{vDMA_A}, v{vT0}")
    if typ == 'B':
        g.e(f"s_and_b32 s{sT}, s{S_WAVE}, 1")
        g.e(f"s_lshl_b32 s{sT}, s{sT}, 3")
        g.e(f"v_lshlrev_b32 v{vT0}, 1, v3")
        g.e(f"v_add_u32 v{vT0}, s{sT}, v{vT0}")
        g.e(f"v_xor_b32 v{vT0}, v{vT0}, v2")
        g.e(f"v_lshlrev_b32 v{vT0}, 4, v{vT0}")
        g.e(f"v_mul_u32_u24 v{vDMA_O}, 1280, v{vT1}")
        g.e(f"v_add_u32 v{vDMA_O}, v{vDMA_O}, v{vT0}")
    def tr_base(dst, tprime_sgpr_expr_setup, rowmul):
        tprime_sgpr_expr_setup()
        g.e(f"s_lshl_b32 s{sT}, s{sT}, 1")
        g.e(f"v_bfe_u32 v{vT0}, v1, 1, 1")
        g.e(f"v_add_u32 v{vT0}, s{sT}, v{vT0}")
        g.e(f"v_lshrrev_b32 v{vT1}, 2, v2")
        g.e(f"v_lshlrev_b32 v{vT1}, 1, v{vT1}")
        g.e(f"v_and_b32 v{dst}, 1, v3")
        g.e(f"v_lshl_add_u32 v{vT1}, v{dst}, 3, v{vT1}")
        g.e(f"v_xor_b32 v{vT0}, v{vT0}, v{vT1}")
        g.e(f"v_lshlrev_b32 v{vT0}, 4, v{vT0}")
        g.e(f"v_and_b32 v{vT1}, 1, v1")
        g.e(f"v_lshl_add_u32 v{vT0}, v{vT1}, 3, v{vT0}")
        g.e(f"v_lshrrev_b32 v{vT1}, 2, v2")
        g.e(f"v_mad_u32_u24 v{vT1}, v3, {rowmul}, v{vT1}")
        g.e(f"v_lshl_add_u32 v{dst}, v{vT1}, 8, v{vT0}")
    if typ == 'A':
        chunks = [('K', S_W1, c, 0) for c in range(4)] + [('K', S_W2, c, 1) for c in range(4)]
    else:
        chunks = [('K', S_W1, c, 0) for c in range(4)] + [('O', S_W2, sg, 0) for sg in range(5)]
    vK0, vK1 = vB0, vB1
    tr_base(vK0, lambda: g.e(f"s_lshl_b32 s{sT}, s{S_WAVE}, 1"), 8)
    tr_base(vK1, lambda: (g.e(f"s_lshl_b32 s{sT}, s{S_WAVE}, 1"), g.e(f"s_add_u32 s{sT}, s{sT}, 1")), 8)
    vO0, vO1 = vt+6, vt+7
    if typ == 'B':
        tr_base(vO0, lambda: g.e(f"s_mov_b32 s{sT}, s{S_WAVE}"), 4)
        tr_base(vO1, lambda: g.e(f"s_add_u32 s{sT}, s{S_WAVE}, 4"), 4)
    g.e(f"s_lshl_b32 s{sCol}, s{S_H}, 8")
    BUF = 40960
    def issue(ci):
        kind, srd, c, T = chunks[ci]
        buf = (ci % 4) * BUF
        n = 10 if kind == 'K' else 8
        for q in range(n):
            if kind == 'K':
                g.e(f"s_add_u32 s{sOff}, s{sCol}, {hex((160*c + 16*q) * 8192)}")
            else:
                g.e(f"s_mul_i32 s{sOff}, s{S_H}, {128*1280}")
                g.e(f"s_add_u32 s{sOff}, s{sOff}, {hex(16*q*1280 + c*256)}")
            g.e(f"s_lshl_b32 s{sT}, s{S_WAVE}, 10")
            g.e(f"s_add_u32 m0, s{sT}, {hex(buf + q*4096)}")
            g.e("s_nop 0")
            g.e(f"buffer_load_dwordx4 v{vDMA_A if kind=='K' else vDMA_O}, s[{srd}:{srd+3}], s{sOff} offen lds")
        return n
    def consume(ci):
        kind, srd, c, T = chunks[ci]
        buf = (ci % 4) * BUF
        if kind == 'K':
            for t in range(2):
                for kl in range(5):
                    kk = 5*c + kl
                    idx = ((T*2 + t)*20 + kk) if typ == 'A' else (t*20 + kk)
                    for half in range(2):
                        g.e(f"ds_read_b64_tr_b16 {wreg2(idx,half)}, v{vK0 if t==0 else vK1} offset:{buf + kl*8192 + half*1024 - (buf//65536)*0}")
        else:
            for tt in range(2):
                ctl = 2*c + tt
                for wp in range(4):
                    idx = 40 + ctl*4 + wp
                    for half in range(2):
                        g.e(f"ds_read_b64_tr_b16 {wreg2(idx,half)}, v{vO0 if tt==0 else vO1} offset:{wp*8192 + half*4096} ;BUF{ci%4}")
    rounds = [list(range(i, min(i+2, len(chunks)))) for i in range(0, len(chunks), 2)]
    cnt = [sum(10 if chunks[ci][0]=='K' else 8 for ci in r) for r in rounds]
    for ci in rounds[0]: issue(ci)
    for ri, r in enumerate(rounds):
        if ri + 1 < len(rounds):
            for ci in rounds[ri+1]: issue(ci)
            g.wait(vm=cnt[ri+1])
        else:
            g.wait(vm=0)
        g.e("s_barrier")
        for ci in r:
            kind, srd, c, T = chunks[ci]
            buf = (ci % 4) * BUF
            if kind == 'K':
                g.e(f"v_add_u32 v{vT0}, {hex(buf)}, v{vK0}")
                g.e(f"v_add_u32 v{vT1}, {hex(buf)}, v{vK1}")
                for t in range(2):
                    for kl in range(5):
                        kk = 5*c + kl
                        idx = ((T*2 + t)*20 + kk) if typ == 'A' else (t*20 + kk)
                        for half in range(2):
                            g.e(f"ds_read_b64_tr_b16 {wreg2(idx,half)}, v{vT0 if t==0 else vT1} offset:{kl*8192 + half*1024}")
            else:
                g.e(f"v_add_u32 v{vT0}, {hex(buf)}, v{vO0}")
                g.e(f"v_add_u32 v{vT1}, {hex(buf)}, v{vO1}")
                for tt in range(2):
                    ctl = 2*c + tt
                    for wp in range(4):
                        idx = 40 + ctl*4 + wp
                        for half in range(2):
                            g.e(f"ds_read_b64_tr_b16 {wreg2(idx,half)}, v{vT0 if tt==0 else vT1} offset:{wp*8192 + half*4096}")
            g.wait(lgkm=0)
        g.e("s_barrier")
```

```python
import sys
from asmlib import *
from wload import *
from layout import *
import chain, producer, aqkv, aattn, final
fast = True
g = G()
ks = []
def pre(end):
    g.e("v_and_b32 v1, 63, v0"); g.e("v_and_b32 v2, 15, v0"); g.e("v_bfe_u32 v3, v0, 4, 2")
    g.e("v_lshrrev_b32 v4, 6, v0"); g.e("s_nop 0"); g.e(f"v_readfirstlane_b32 s32, v4")
L = "stage1_kernel"; kernel_head(g, L); ks.append((L, 197, 256, 163840, 512, 96, 256))
g.e("s_cmp_ge_u32 s2, 197"); g.e("s_cbranch_scc1 k1_end")
g.e("s_load_dwordx4 s[72:75], s[0:1], 40"); g.e("s_load_dwordx4 s[76:79], s[0:1], 56")
g.e("s_load_dwordx2 s[6:7], s[0:1], 104"); g.e("s_load_dwordx4 s[80:83], s[0:1], 0"); g.e("s_load_dwordx2 s[84:85], s[0:1], 16")
pre("k1_end")
g.wait(lgkm=0)
g.srd(8, 6, 268435456); g.srd(24, 80, 2048*1280)
g.e("s_cmp_ge_u32 s2, 192"); g.e("s_cbranch_scc1 k1_wot")
g.e("s_cmp_ge_u32 s2, 128"); g.e("s_cbranch_scc1 k1_aq")
g.e(f"s_and_b32 s33, s2, 1"); g.smov(35, 2); g.e(f"s_lshr_b32 s30, s2, 2")
g.e("s_bitcmp1_b32 s2, 1"); g.e("s_cbranch_scc1 k1_B")
g.srd(12, 72, 640*4096*2); g.srd(16, 74, 640*4096*2)
producer.gen_producer(g, 'A', "PA"); g.e("s_endpgm")
g.lbl("k1_B")
g.srd(12, 76, 640*4096*2); g.srd(16, 78, 640*4096*2)
producer.gen_producer(g, 'B', "PB"); g.e("s_endpgm")
g.lbl("k1_aq")
g.srd(12, 82, 640*3840)
g.e("s_sub_u32 s54, s2, 128"); g.e("s_lshr_b32 s30, s54, 2"); g.e("s_and_b32 s33, s54, 3"); g.e("s_lshl_b32 s33, s33, 4"); g.e("s_add_u32 s34, s33, 16")
aqkv.gen_aqkv(g, "AQ"); g.e("s_endpgm")
g.lbl("k1_wot")
g.srd(12, 84, 640*1280)
g.e("s_sub_u32 s30, s2, 192")
final.gen_wot(g, "WT", 12, 30)
g.lbl("k1_end"); g.e("s_endpgm")
L = "stage2_kernel"; kernel_head(g, L); ks.append((L, 256, 256, 163840, 512, 96, 256))
from chain import *
g.e("s_cmp_ge_u32 s2, 256"); g.e("s_cbranch_scc1 ck_end")
g.e("s_load_dwordx4 s[72:75], s[0:1], 40"); g.e("s_load_dwordx4 s[76:79], s[0:1], 56")
g.e("s_load_dwordx4 s[4:7], s[0:1], 96"); g.e("s_load_dwordx2 s[80:81], s[0:1], 32")
pre("ck_end")
g.e(f"s_getreg_b32 s{S_X}, hwreg(HW_REG_XCC_ID)"); g.e(f"s_and_b32 s{S_X}, s{S_X}, 15")
g.wait(lgkm=0)
g.srd(S_WS, 6, 268435456); g.srd(S_DBG, 4, 256); g.srd(S_MEM0, 80, 10240)
def ticket(idx_sgpr_setup, dst, lab):
    g.e(f"s_cmp_eq_u32 s{S_WAVE}, 0"); g.e(f"s_cbranch_scc0 {lab}")
    idx_sgpr_setup()
    g.e(f"v_mov_b32 v4, 1"); g.e("v_mov_b32 v5, s54"); g.e("v_mov_b32 v6, 0")
    g.e("s_mov_b64 exec, 1")
    g.e(f"buffer_atomic_add v4, v5, s[{S_DBG}:{S_DBG+3}], 0 offen sc0")
    g.wait(vm=0); g.e("ds_write_b32 v6, v4"); g.wait(lgkm=0)
    g.e("s_mov_b64 exec, -1")
    g.lbl(lab)
    g.e("s_barrier")
    g.e("v_mov_b32 v6, 0"); g.e("ds_read_b32 v4, v6"); g.wait(lgkm=0)
    g.e(f"v_readfirstlane_b32 s{dst}, v4")
    g.e("s_barrier")
ticket(lambda: g.e(f"s_lshl_b32 s54, s{S_X}, 2"), S_J, "ck_tk")
g.e(f"s_cmp_ge_u32 s{S_X}, 2"); g.e("s_cbranch_scc1 ck_att")
g.e(f"s_cmp_ge_u32 s{S_J}, 32"); g.e("s_cbranch_scc1 ck_att")
g.e(f"s_lshr_b32 s{S_HL}, s{S_J}, 1")
g.e(f"s_lshl_b32 s{S_H}, s{S_X}, 4"); g.e(f"s_add_u32 s{S_H}, s{S_H}, s{S_HL}")
g.e(f"s_and_b32 s54, s{S_J}, 1"); g.e("s_cmp_eq_u32 s54, 1"); g.e("s_cbranch_scc1 ck_B")
g.srd(S_W1, 72, 640*4096*2); g.srd(S_W2, 74, 640*4096*2)
gen_chain(g, 'A', fast, False)
g.lbl("ck_B")
g.srd(S_W1, 76, 640*4096*2); g.srd(S_W2, 78, 640*4096*2)
gen_chain(g, 'B', fast, False)
g.lbl("ck_att")
ticket(lambda: g.smov(54, DBG_WORK*4), 40, "ck_tk2")
g.e("s_cmp_ge_u32 s40, 256"); g.e("s_cbranch_scc1 ck_end")
g.e("s_lshr_b32 s30, s40, 3"); g.e("s_and_b32 s31, s40, 7")
aattn.gen_aattn(g, "AT")
g.e("s_branch ck_att")
g.lbl("ck_end"); g.e("s_endpgm")
L = "stage3_kernel"; kernel_head(g, L); ks.append((L, 256, 256, 0, 256, 96, 256))
g.e("s_cmp_ge_u32 s2, 256"); g.e("s_cbranch_scc1 k3_end")
g.e("s_load_dwordx2 s[6:7], s[0:1], 104"); pre("k3_end"); g.wait(lgkm=0); g.srd(8, 6, 268435456)
g.e("s_lshr_b32 s30, s2, 2"); g.e("s_and_b32 s31, s2, 3")
final.gen_ptok(g, "PT")
g.lbl("k3_end"); g.e("s_endpgm")
L = "stage4_kernel"; kernel_head(g, L); ks.append((L, 512, 256, 90112, 256, 96, 256))
g.e("s_cmp_ge_u32 s2, 512"); g.e("s_cbranch_scc1 k4_end")
g.e("s_load_dwordx2 s[6:7], s[0:1], 104"); g.e("s_load_dwordx2 s[80:81], s[0:1], 0"); g.e("s_load_dwordx4 s[72:75], s[0:1], 80")
pre("k4_end"); g.wait(lgkm=0)
g.srd(8, 6, 268435456); g.srd(24, 80, 2048*1280); g.srd(12, 72, 1280); g.srd(16, 74, 2048*1280)
g.e("s_lshr_b32 s30, s2, 3"); g.e("s_and_b32 s31, s2, 7")
final.gen_gout(g, "GO", 24, 12, 16)
g.lbl("k4_end"); g.e("s_endpgm")
open(sys.argv[1] if len(sys.argv) > 1 else "multi.s", "w").write(wrap(ks, g.text()))
```

```python
from asmlib import *
from wload import *
from layout import *

S_WS, S_DBG, S_MEM0 = 8, 20, 24
S_X, S_J, S_HL, S_STEP = 28, 29, 31, 33
S_CUR, S_NXT, S_N2, S_PRV = 34, 35, 36, 37
S_KF, S_BF = 39, 40
S_MLO8 = 44; S_SMV = 46; S_SMS = 48; S_MPM = 50; S_GLO2 = 52
S_T0, S_T1, S_T2 = 54, 55, 56
S_C, S_SPIN, S_C0 = 57, 58, 59
S_ST = 60
S_CPY, S_CPK = 72, 73
V_MG, V_ML, V_L16, V_PA, V_PM, V_Y0, V_Y1, V_BF0, V_BF1, V_KF = 4,5,6,7,8,9,10,11,12,13
V_SPW, V_SPR, V_PST, V_RPW, V_RPR, V_MPL, V_MPR, V_YST, V_POI, V_NEG, V_KM = 14,15,16,17,18,19,20,21,22,26,27
V_MF = 32
V_ACC = 112
V_BFR = 128
V_KX = 152
V_T = 168
V_YF = 176
V_KFR = 184
LDS_M, LDS_SP, LDS_RP = 0, 0x5000, 0x8000
NSTEP = 64

def chk(g, regs, t):
    flat = [r + i for r in regs for i in range(4)]
    g.e(f"v_max3_u32 v{t}, v{flat[0]}, v{flat[1]}, v{flat[2]}")
    i = 3
    while i < len(flat):
        if i + 1 < len(flat):
            g.e(f"v_max3_u32 v{t}, v{t}, v{flat[i]}, v{flat[i+1]}"); i += 2
        else:
            g.e(f"v_max_u32 v{t}, v{t}, v{flat[i]}"); i += 1
    g.e(f"v_cmp_eq_u32 vcc, -1, v{t}")

def poll(g, P, loads, regs, t, first_wait=0, pre_issued=False, cnt=None):
    ok = g.new(P+"ok"); rt = g.new(P+"rt")
    if not pre_issued: loads()
    g.wait(vm=first_wait)
    chk(g, regs, t)
    g.e(f"s_cbranch_vccnz {rt}")
    g.lbl(ok)
    def tail():
        g.lbl(rt)
        if cnt is not None: g.e(f"s_add_u32 s{cnt}, s{cnt}, 1")
        g.e(f"s_sub_u32 s{S_SPIN}, s{S_SPIN}, 1")
        bad = g.new(P+"bad")
        g.e(f"s_cbranch_scc1 {bad}")
        loads()
        g.wait(vm=0)
        chk(g, regs, t)
        g.e(f"s_cbranch_vccnz {rt}")
        g.e(f"s_branch {ok}")
        g.lbl(bad)
        g.e(f"s_mov_b32 s{S_SPIN}, 0")
        g.e(f"s_branch {ok}")
    g.tails.append(tail)

def stamp(g, i, on):
    if not on: return
    g.e(f"s_memtime s[{S_ST}:{S_ST+1}]"); g.wait(lgkm=0)
    g.e(f"s_sub_u32 s71, s{S_ST}, s70"); g.e(f"s_add_u32 s{62+i}, s{62+i}, s71"); g.e(f"s_mov_b32 s70, s{S_ST}")

def gen_chain(g, typ, fast, stamps=False, hooks=None):
    P = "E" + typ + ("f" if fast else "s")
    LOC = "" if fast else " sc1"
    isA = typ == 'A'
    two = not isA
    hooks = hooks or {}
    g.tails = []
    WS = f"s[{S_WS}:{S_WS+3}]"
    gen_load_weights(g, typ, V_T, S_T0)
    g.c("---- per-lane constants")
    T = V_T
    g.e(f"v_lshlrev_b32 v{V_L16}, 4, v1")
    g.e(f"v_cmp_gt_u32 s[{S_MLO8}:{S_MLO8+1}], 8, v2")
    g.e(f"v_cmp_gt_u32 s[{S_GLO2}:{S_GLO2+1}], 2, v3")
    g.e(f"v_and_b32 v{T}, 7, v2"); g.e(f"v_lshrrev_b32 v{T+6}, 3, v2")
    g.e(f"s_mul_i32 s{S_T0}, s{S_X}, {GRP}")
    g.e(f"s_mul_i32 s{S_T1}, s{S_X}, 10240")
    g.e(f"s_sub_u32 s{S_T2}, {3*10240}, s{S_T1}")
    g.e(f"s_cmp_lt_u32 s{S_WAVE}, 2"); g.e(f"s_cselect_b32 s{S_T1}, s{S_T1}, s{S_T2}")
    g.e(f"s_and_b32 s{S_T2}, s{S_WAVE}, 1"); g.e(f"s_mul_i32 s{S_T2}, s{S_T2}, 5120"); g.e(f"s_add_u32 s{S_T1}, s{S_T1}, s{S_T2}")
    g.e(f"s_add_u32 s{S_T1}, s{S_T1}, {MOFF}")
    g.e(f"v_lshl_add_u32 v{T+1}, v{T+6}, 9, s{S_T1}")
    g.e(f"v_lshl_add_u32 v{T+1}, v3, 7, v{T+1}")
    g.e(f"v_lshl_add_u32 v{V_MG}, v{T}, 4, v{T+1}")
    g.e(f"s_and_b32 s{S_T2}, s{S_WAVE}, 1"); g.e(f"s_mul_i32 s{S_T2}, s{S_T2}, 10240")
    g.e(f"s_lshr_b32 s{S_T1}, s{S_WAVE}, 1"); g.e(f"s_lshl_b32 s{S_T1}, s{S_T1}, 7"); g.e(f"s_add_u32 s{S_T2}, s{S_T2}, s{S_T1}")
    g.e(f"v_lshl_add_u32 v{T+1}, v{T+6}, 10, s{S_T2}")
    g.e(f"v_lshl_add_u32 v{T+1}, v3, 8, v{T+1}")
    g.e(f"v_lshl_add_u32 v{V_ML}, v{T}, 4, v{T+1}")
    g.e(f"s_lshl_b32 s{S_T2}, s{S_WAVE}, 11"); g.e(f"s_add_u32 s{S_T2}, s{S_T2}, s{S_T0}")
    g.e(f"v_lshl_add_u32 v{T+1}, v2, 6, s{S_T2}")
    g.e(f"v_lshl_add_u32 v{V_PA}, v3, 4, v{T+1}")
    g.e(f"s_lshl_b32 s{S_T2}, s{S_WAVE}, 9"); g.e(f"s_add_u32 s{S_T2}, s{S_T2}, s{S_T0}"); g.e(f"s_add_u32 s{S_T2}, s{S_T2}, {PMM}")
    g.e(f"v_lshl_add_u32 v{T+1}, v3, 7, s{S_T2}")
    g.e(f"v_lshl_add_u32 v{V_PM}, v{T}, 4, v{T+1}")
    g.e(f"s_lshr_b32 s{S_T1}, s{S_J}, 1"); g.e(f"s_mul_i32 s{S_T1}, s{S_T1}, 40")
    if not two: g.e(f"s_add_u32 s{S_T1}, s{S_T1}, 24")
    g.e(f"s_mov_b32 s{S_C0}, s{S_T1}")
    g.e(f"s_mul_i32 s{S_T2}, s{S_WAVE}, {4*10240}"); g.e(f"s_add_u32 s{S_T2}, s{S_T2}, s{S_T0}"); g.e(f"s_add_u32 s{S_T2}, s{S_T2}, {YOFF}")
    g.e(f"v_mul_u32_u24 v{T+1}, 10240, v3"); g.e(f"v_add_u32 v{T+1}, s{S_T2}, v{T+1}")
    g.e(f"v_add_u32 v{T+2}, s{S_C0}, v2")
    g.e(f"v_add_u32 v{T+3}, s{S_C0}, v{T}"); g.e(f"v_add_u32 v{T+3}, 16, v{T+3}")
    g.e(f"v_lshl_add_u32 v{V_Y0}, v{T+2}, 4, v{T+1}"); g.e(f"v_lshl_add_u32 v{V_Y1}, v{T+3}, 4, v{T+1}")
    g.e(f"s_lshl_b32 s{S_T2}, s{S_X}, 4"); g.e(f"s_lshl_b32 s{S_ST}, s{S_WAVE}, 2"); g.e(f"s_add_u32 s{S_T2}, s{S_T2}, s{S_ST}")
    g.e(f"s_mul_i32 s{S_T2}, s{S_T2}, 40960")
    for dst, col in ((V_BF0, T+2), (V_BF1, T+3)):
        g.e(f"v_lshrrev_b32 v{T+4}, 4, v{col}"); g.e(f"v_lshlrev_b32 v{T+4}, 10, v{T+4}")
        g.e(f"v_and_b32 v{T+5}, 15, v{col}"); g.e(f"v_lshl_add_u32 v{T+5}, v3, 4, v{T+5}")
        g.e(f"v_lshl_add_u32 v{T+4}, v{T+5}, 4, v{T+4}")
        g.e(f"v_add_u32 v{dst}, s{S_T2}, v{T+4}")
    g.e(f"v_mul_u32_u24 v{T+4}, 40960, v{T+6}"); g.e(f"v_add_u32 v{V_BF1}, v{V_BF1}, v{T+4}")
    g.e(f"s_lshl_b32 s{S_T2}, s{S_H}, 13"); g.e(f"s_lshl_b32 s{S_ST}, s{S_WAVE}, 11"); g.e(f"s_add_u32 s{S_T2}, s{S_T2}, s{S_ST}")
    g.e(f"v_add_u32 v{V_KF}, s{S_T2}, v{V_L16}")
    g.e(f"s_lshl_b32 s{S_T2}, s{S_H}, 12"); g.e(f"s_lshl_b32 s{S_ST}, s{S_WAVE}, 10"); g.e(f"s_add_u32 s{S_T2}, s{S_T2}, s{S_ST}")
    g.e(f"v_add_u32 v{V_KM}, s{S_T2}, v{V_L16}")
    g.e(f"s_mul_i32 s{S_T2}, s{S_WAVE}, 3072"); g.e(f"s_add_u32 s{S_T2}, s{S_T2}, {LDS_SP}")
    g.e(f"v_add_u32 v{V_SPW}, s{S_T2}, v{V_L16}")
    g.e(f"s_lshl_b32 s{S_T2}, s{S_WAVE}, 11"); g.e(f"s_add_u32 s{S_T2}, s{S_T2}, {LDS_RP}")
    g.e(f"v_add_u32 v{V_RPW}, s{S_T2}, v{V_L16}")
    g.e(f"v_add_u32 v{V_RPR}, {LDS_RP}, v{V_L16}")
    g.e(f"s_and_b32 s{S_T2}, s{S_WAVE}, 1"); g.e(f"s_lshl_b32 s{S_T2}, s{S_T2}, 1")
    g.e(f"s_lshr_b32 s{S_ST}, s{S_C0}, 3"); g.e(f"s_add_u32 s{S_T2}, s{S_T2}, s{S_ST}")
    g.e(f"v_lshrrev_b32 v{T+1}, 1, v3"); g.e(f"v_add_u32 v{T+1}, s{S_T2}, v{T+1}")
    g.e(f"v_lshlrev_b32 v{T+1}, 7, v{T+1}"); g.e(f"v_lshl_add_u32 v{T+1}, v2, 4, v{T+1}")
    g.e(f"v_and_b32 v{T+2}, 1, v3"); g.e(f"v_lshl_add_u32 v{T+1}, v{T+2}, 3, v{T+1}")
    g.e(f"s_mul_i32 s{S_T2}, s{S_X}, 10240"); g.e(f"s_add_u32 s{S_T2}, s{S_T2}, {MOFF}")
    g.e(f"v_add_u32 v{V_MPL}, s{S_T2}, v{T+1}"); g.e(f"v_add_u32 v{V_MPR}, 20480, v{V_MPL}")
    g.e(f"s_mov_b64 s[{S_MPM}:{S_MPM+1}], 0")
    l1 = g.new(P+"m"); l2 = g.new(P+"m")
    g.e(f"s_cmp_eq_u32 s{S_WAVE}, 0"); g.e(f"s_cbranch_scc0 {l1}")
    g.e(f"s_mov_b64 s[{S_MPM}:{S_MPM+1}], s[{S_MLO8}:{S_MLO8+1}]")
    g.lbl(l1)
    if two:
        g.e(f"s_cmp_eq_u32 s{S_WAVE}, 1"); g.e(f"s_cbranch_scc0 {l2}")
        g.e(f"s_and_b64 s[{S_MPM}:{S_MPM+1}], s[{S_MLO8}:{S_MLO8+1}], s[{S_GLO2}:{S_GLO2+1}]")
        g.e(f"v_add_u32 v{V_RPR}, 1024, v{V_RPR}")
        g.lbl(l2)
    for r in range(4): g.e(f"v_mov_b32 v{V_POI+r}, -1")
    g.e(f"v_mov_b32 v{V_NEG}, 0xff61b1e6")
    g.smov(S_C, 0x3e0293ee)
    if isA:
        g.e(f"v_lshrrev_b32 v{T+1}, 2, v2"); g.e(f"v_and_b32 v{T+2}, 3, v2"); g.e(f"v_and_b32 v{T+3}, 1, v3")
        g.e(f"s_lshl_b32 s{S_T2}, s{S_WAVE}, 1"); g.e(f"v_add_u32 v{T+3}, s{S_T2}, v{T+3}")
        g.e(f"v_min_u32 v{T+4}, 2, v{T+1}"); g.e(f"v_lshlrev_b32 v{T+4}, 10, v{T+4}")
        g.e(f"v_lshl_add_u32 v{T+5}, v{T+2}, 4, v{T+3}"); g.e(f"v_lshl_add_u32 v{T+4}, v{T+5}, 4, v{T+4}")
        g.e(f"v_add_u32 v{V_SPR}, {LDS_SP}, v{T+4}")
        g.e(f"v_cmp_gt_u32 s[{S_SMV}:{S_SMV+1}], 2, v2")
        g.e(f"v_subrev_u32 v{T+4}, 4, v2"); g.e(f"v_cmp_gt_u32 vcc, 8, v{T+4}")
        g.e(f"s_or_b64 s[{S_SMV}:{S_SMV+1}], s[{S_SMV}:{S_SMV+1}], vcc")
        g.e(f"s_and_b64 s[{S_SMS}:{S_SMS+1}], s[{S_SMV}:{S_SMV+1}], s[{S_GLO2}:{S_GLO2+1}]")
        g.e(f"s_lshl_b32 s{S_T2}, s{S_HL}, 7"); g.e(f"s_add_u32 s{S_T2}, s{S_T2}, {PMM}")
        g.e(f"v_lshl_add_u32 v{T+4}, v{T+3}, 4, s{S_T2}"); g.e(f"v_lshl_add_u32 v{T+4}, v{T+2}, 3, v{T+4}")
        g.e(f"s_lshl_b32 s{S_T2}, s{S_HL}, 9"); g.e(f"s_sub_u32 s{S_T2}, s{S_T2}, 8")
        g.e(f"v_lshl_add_u32 v{T+5}, v{T+3}, 6, s{S_T2}"); g.e(f"v_lshl_add_u32 v{T+5}, v{T+2}, 4, v{T+5}")
        g.e(f"v_lshl_add_u32 v{T+5}, v{T+1}, 3, v{T+5}")
        g.e(f"v_cmp_eq_u32 vcc, 0, v{T+1}"); g.e("s_nop 1")
        g.e(f"v_cndmask_b32 v{V_PST}, v{T+5}, v{T+4}, vcc")
        g.e(f"v_add_u32 v{V_PST}, s{S_T0}, v{V_PST}")
    else:
        g.e(f"s_mul_i32 s{S_T2}, s{S_HL}, 10240"); g.e(f"s_add_u32 s{S_T2}, s{S_T2}, s{S_T0}"); g.e(f"s_add_u32 s{S_T2}, s{S_T2}, {YOFF}")
        g.e(f"s_lshl_b32 s{S_ST}, s{S_WAVE}, 8"); g.e(f"s_add_u32 s{S_T2}, s{S_T2}, s{S_ST}")
        g.e(f"v_lshrrev_b32 v{T+1}, 1, v3"); g.e(f"v_lshl_add_u32 v{T+1}, v{T+1}, 10, s{S_T2}")
        g.e(f"v_lshl_add_u32 v{T+1}, v2, 4, v{T+1}"); g.e(f"v_and_b32 v{T+2}, 1, v3")
        g.e(f"v_lshl_add_u32 v{V_YST}, v{T+2}, 3, v{T+1}")
        g.e(f"s_mul_i32 s{S_T2}, s{S_H}, 10240"); g.e(f"s_add_u32 s{S_T2}, s{S_T2}, s{S_ST}")
        g.e(f"v_lshrrev_b32 v{T+1}, 1, v3"); g.e(f"v_lshl_add_u32 v{T+1}, v{T+1}, 10, s{S_T2}")
        g.e(f"v_lshl_add_u32 v{T+1}, v2, 4, v{T+1}")
        g.e(f"v_lshl_add_u32 v{V_KM}, v{T+2}, 3, v{T+1}")

    def st_poison_own(soff):
        if isA:
            g.e(f"s_mov_b64 exec, s[{S_SMS}:{S_SMS+1}]")
            g.e(f"buffer_store_dwordx2 v[{V_POI}:{V_POI+1}], v{V_PST}, {WS}, s{soff} offen{LOC}")
            g.e("s_mov_b64 exec, -1")
        else:
            for u in range(5):
                g.e(f"s_add_u32 s{S_T2}, s{soff}, {u*2048}")
                g.e(f"buffer_store_dwordx2 v[{V_POI}:{V_POI+1}], v{V_YST}, {WS}, s{S_T2} offen{LOC}")
    def st_poison_mp(soff):
        sk = g.new(P+"pm")
        g.e(f"s_mov_b64 exec, s[{S_MPM}:{S_MPM+1}]"); g.e(f"s_cbranch_execz {sk}")
        g.e(f"buffer_store_dwordx2 v[{V_POI}:{V_POI+1}], v{V_MPL}, {WS}, s{soff} offen{LOC}")
        g.e(f"buffer_store_dwordx2 v[{V_POI}:{V_POI+1}], v{V_MPR}, {WS}, s{soff} offen sc1")
        g.lbl(sk); g.e("s_mov_b64 exec, -1")
    def prefetch(bf, kf):
        n = 0
        if isA:
            for tt in range(2):
                g.e(f"buffer_load_dwordx4 {v(V_KX+4*tt,4)}, v{V_KF}, {WS}, s{kf} offen offset:{1024*tt} sc1"); n += 1
        for hh in range(4):
            g.e(f"s_add_u32 s{S_T2}, s{bf}, {hh*40960}")
            g.e(f"buffer_load_dwordx4 {v(V_BFR+4*hh,4)}, v{V_BF0}, {WS}, s{S_T2} offen sc1"); n += 1
        if two:
            for pp in range(2):
                g.e(f"s_add_u32 s{S_T2}, s{bf}, {2*pp*40960}")
                g.e(f"buffer_load_dwordx4 {v(V_BFR+16+4*pp,4)}, v{V_BF1}, {WS}, s{S_T2} offen sc1"); n += 1
        return n
    g.c("---- initial poison")
    for sl in range(4):
        g.smov(S_T1, WS_RING + sl*SLOT); st_poison_own(S_T1); st_poison_mp(S_T1)
    g.wait(vm=0); g.e("s_barrier")
    sk = g.new(P+"sb")
    g.e(f"s_cmp_eq_u32 s{S_WAVE}, 0"); g.e(f"s_cbranch_scc0 {sk}")
    g.e(f"v_mov_b32 v{T}, 1"); g.e(f"v_mov_b32 v{T+1}, {DBG_CHAIN_UP*4}")
    g.e("s_mov_b64 exec, 1")
    g.e(f"buffer_atomic_add v{T}, v{T+1}, s[{S_DBG}:{S_DBG+3}], 0 offen")
    g.e("s_mov_b64 exec, -1")
    g.smov(S_SPIN, 1 << 20)
    lp = g.new(P+"sbl"); dn = g.new(P+"sbd")
    g.lbl(lp)
    g.e(f"buffer_load_dword v{T+2}, v{T+1}, s[{S_DBG}:{S_DBG+3}], 0 offen sc1")
    g.wait(vm=0)
    g.e(f"v_cmp_gt_u32 vcc, 64, v{T+2}"); g.e(f"s_cbranch_vccz {dn}")
    g.e(f"s_sub_u32 s{S_SPIN}, s{S_SPIN}, 1"); g.e(f"s_cbranch_scc0 {lp}")
    g.lbl(dn); g.lbl(sk)
    g.smov(S_SPIN, 1 << 22)
    if 'pre_loop' in hooks: hooks['pre_loop'](g)
    g.c("---- M(0)")
    g.e(f"v_and_b32 v{T}, 7, v2"); g.e(f"v_mul_u32_u24 v{T}, 1280, v{T}")
    g.e(f"v_lshl_add_u32 v{T}, v3, 4, v{T}")
    g.e(f"v_lshrrev_b32 v{T+1}, 3, v2"); g.e(f"v_lshl_add_u32 v{T}, v{T+1}, 6, v{T}")
    g.e(f"s_and_b32 s{S_T2}, s{S_WAVE}, 1"); g.e(f"s_mul_i32 s{S_T2}, s{S_T2}, 640")
    g.e(f"s_lshr_b32 s{S_T1}, s{S_WAVE}, 1"); g.e(f"s_lshl_b32 s{S_T1}, s{S_T1}, 28"); g.e(f"s_add_u32 s{S_T2}, s{S_T2}, s{S_T1}")
    g.e(f"v_add_u32 v{T}, s{S_T2}, v{T}")
    for q in range(5):
        g.e(f"buffer_load_dwordx4 {v(V_MF+4*q,4)}, v{T}, s[{S_MEM0}:{S_MEM0+3}], 0 offen offset:{128*q}")
    g.smov(S_KF, WS_KF); g.smov(S_BF, WS_BF)
    g.smov(S_CPK, WS_STAMP + 0x80000)
    for r in range(4): g.e(f"v_mov_b32 v{V_KFR+r}, 0")
    g.wait(vm=0)
    for q in range(5):
        g.e(f"ds_write_b128 v{V_ML}, {v(V_MF+4*q,4)} offset:{2048*q}")
    g.smov(S_CUR, WS_RING); g.smov(S_NXT, WS_RING + SLOT); g.smov(S_N2, WS_RING + 2*SLOT); g.smov(S_PRV, WS_RING + 3*SLOT)
    g.smov(S_STEP, 0)
    g.wait(lgkm=0); g.e("s_barrier")
    if stamps:
        for i in range(8): g.smov(62+i, 0)
        g.e(f"s_memtime s[{S_ST}:{S_ST+1}]"); g.wait(lgkm=0); g.e(f"s_mov_b32 s70, s{S_ST}")
    LOOP = P + "_loop"; LAST = P + "_last"
    g.lbl(LOOP)
    for kk in range(20):
        g.e(f"ds_read_b128 {v(V_MF+4*kk,4)}, v{V_L16} offset:{LDS_M + 1024*kk}")
    fr = V_T
    if isA: order = [(t, kk) for kk in range(20) for t in (0, 1)] + [(t, kk) for kk in range(20) for t in (2, 3)]
    else:   order = [(t, kk) for kk in range(20) for t in (0, 1)]
    post_q = []
    if isA:
        for r in range(8):
            post_q.append(lambda r=r: g.e(f"v_add_f32_dpp v{V_ACC+r}, v{V_ACC+r}, v{V_ACC+r} row_ror:8 row_mask:0xf bank_mask:0xf"))
        for t in range(2):
            post_q.append(lambda t=t: g.e(f"v_cvt_pk_bf16_f32 v{fr+2*t}, v{V_ACC+4*t}, v{V_ACC+4*t+1}"))
            post_q.append(lambda t=t: g.e(f"v_cvt_pk_bf16_f32 v{fr+2*t+1}, v{V_ACC+4*t+2}, v{V_ACC+4*t+3}"))
        post_q.append(lambda: g.wait(vm=6))
        post_q.append(lambda: g.e(f"v_mfma_f32_16x16x32_bf16 {v(V_ACC,4)}, {v(V_KX,4)}, {v(fr,4)}, 0"))
        post_q.append(lambda: g.e(f"v_mfma_f32_16x16x32_bf16 {v(V_ACC+4,4)}, {v(V_KX+4,4)}, {v(fr,4)}, 0"))
        for _ in range(8): post_q.append(lambda: None)
        post_q.append(lambda: g.e(f"ds_write_b128 v{V_SPW}, {v(V_ACC,4)} offset:1024"))
        post_q.append(lambda: g.e(f"ds_write_b128 v{V_SPW}, {v(V_ACC+4,4)} offset:2048"))
    F = []
    if isA:
        for tt in range(2):
            F.append(lambda tt=tt: g.e(f"buffer_load_dwordx4 {v(V_KX+4*tt,4)}, v{V_KF}, {WS}, s{S_KF} offen offset:{1024*tt} sc1"))
    for hh in range(4):
        F.append(lambda hh=hh: (g.e(f"s_add_u32 s{S_T2}, s{S_BF}, {hh*40960}"),
                 g.e(f"buffer_load_dwordx4 {v(V_BFR+4*hh,4)}, v{V_BF0}, {WS}, s{S_T2} offen sc1")))
    if two:
        for pp in range(2):
            F.append(lambda pp=pp: (g.e(f"s_add_u32 s{S_T2}, s{S_BF}, {2*pp*40960}"),
                     g.e(f"buffer_load_dwordx4 {v(V_BFR+16+4*pp,4)}, v{V_BF1}, {WS}, s{S_T2} offen sc1")))
    if isA:
        F.append(lambda: g.e(f"buffer_store_dwordx4 {v(V_KFR,4)}, v{V_KM}, {WS}, s{S_CPK} offen sc1"))
        F.append(lambda: st_poison_own(S_PRV))
    F.append(lambda: st_poison_mp(S_PRV))
    if hooks.get('nofill'): F = []
    if hooks.get('fillsel') is not None: F = [F[i] for i in hooks['fillsel'] if i < len(F)]
    every = hooks.get('every', 4)
    fi = 0
    pq = 0
    for i, (t, kk) in enumerate(order):
        if i < 40 and t == 0: g.wait(lgkm=min(15, 19-kk))
        c = "0" if kk == 0 else v(V_ACC+4*t, 4)
        g.e(f"v_mfma_f32_16x16x32_bf16 {v(V_ACC+4*t,4)}, {wreg(t*20+kk)}, {v(V_MF+4*kk,4)}, {c}")
        if i % every == every - 1 and fi < len(F):
            F[fi](); fi += 1
        if isA and i >= 48 and pq < len(post_q):
            post_q[pq](); pq += 1
    assert pq == len(post_q) and fi == len(F)
    g.nop(8)
    lo = 8 if isA else 0
    for r in range(lo, lo+8):
        g.e(f"v_add_f32_dpp v{V_ACC+r}, v{V_ACC+r}, v{V_ACC+r} row_ror:8 row_mask:0xf bank_mask:0xf")
    fo = V_KFR if isA else fr
    for t in range(2):
        b = V_ACC + lo + 4*t
        g.e(f"v_cvt_pk_bf16_f32 v{fo+2*t}, v{b}, v{b+1}"); g.e(f"v_cvt_pk_bf16_f32 v{fo+2*t+1}, v{b+2}, v{b+3}")
    stamp(g, 0, stamps)
    if hooks.get('bench'):
        g.e(f"s_add_u32 s{S_STEP}, s{S_STEP}, 1")
        g.e(f"s_add_u32 s{S_KF}, s{S_KF}, {1<<18}"); g.e(f"s_add_u32 s{S_BF}, s{S_BF}, {32*40960}")
        g.wait(vm=0)
        g.e(f"s_cmp_eq_u32 s{S_STEP}, {NSTEP-1}"); g.e(f"s_cbranch_scc1 {LAST}")
        g.e("s_barrier")
        stamp(g, 1, stamps)
        for w in range(3):
            g.e(f"s_cmp_eq_u32 s{S_WAVE}, {w}"); g.e(f"s_cbranch_scc1 {LOOP}")
            if hooks.get('skew', 1): g.nop(hooks.get('skew', 1))
        g.e(f"s_branch {LOOP}")
    H = V_MF + 56
    tchk = V_T + 20
    def ldY():
        g.e(f"buffer_load_dwordx4 {v(V_YF,4)}, v{V_Y0}, {WS}, s{S_CUR} offen sc1")
        if two: g.e(f"buffer_load_dwordx4 {v(V_YF+4,4)}, v{V_Y1}, {WS}, s{S_CUR} offen sc1")
    def ldPm(): g.e(f"buffer_load_dwordx4 {v(H+8,4)}, v{V_PM}, {WS}, s{S_CUR} offen sc1")
    def ldPx():
        g.e(f"buffer_load_dwordx4 {v(H,4)}, v{V_PA}, {WS}, s{S_CUR} offen sc1")
        g.e(f"buffer_load_dwordx4 {v(H+4,4)}, v{V_PA}, {WS}, s{S_CUR} offen offset:1024 sc1")
    def copies():
        if isA:
            g.e(f"s_lshl_b32 s{S_CPK}, s{S_STEP}, 17"); g.e(f"s_add_u32 s{S_CPK}, s{S_CPK}, {hex(WS_KM)}")
            g.e(f"buffer_store_dwordx4 {v(V_KFR,4)}, v{V_KM}, {WS}, s{S_CPK} offen sc1")
        else:
            g.e(f"s_mul_i32 s{S_CPY}, s{S_STEP}, {32*10240}"); g.e(f"s_add_u32 s{S_CPY}, s{S_CPY}, {hex(WS_YT)}")
            for u in range(5):
                yp = (V_T+2*u) if u < 4 else V_KFR
                g.e(f"s_add_u32 s{S_T2}, s{S_CPY}, {u*2048}")
                g.e(f"buffer_store_dwordx2 v[{yp}:{yp+1}], v{V_KM}, {WS}, s{S_T2} offen sc1")
    if isA:
        g.e("s_nop 1")
        g.e(f"v_mfma_f32_16x16x32_bf16 {v(V_T+4,4)}, {v(V_KFR,4)}, {v(fr,4)}, 0")
        g.nop(8)
        g.e(f"ds_write_b128 v{V_SPW}, {v(V_T+4,4)}")
        ldY()
        g.wait(lgkm=0); g.e("s_barrier")
        R = V_MF
        for wp in range(4): g.e(f"ds_read_b128 {v(R+4*wp,4)}, v{V_SPR} offset:{3072*wp}")
        X = V_MF + 16
        g.wait(lgkm=2)
        g.e(f"v_pk_add_f32 {v(X,2)}, {v(R,2)}, {v(R+4,2)}"); g.e(f"v_pk_add_f32 {v(X+2,2)}, {v(R+2,2)}, {v(R+6,2)}")
        g.wait(lgkm=0)
        g.e(f"v_pk_add_f32 {v(X+4,2)}, {v(R+8,2)}, {v(R+12,2)}"); g.e(f"v_pk_add_f32 {v(X+6,2)}, {v(R+10,2)}, {v(R+14,2)}")
        g.e(f"v_pk_add_f32 {v(X,2)}, {v(X,2)}, {v(X+4,2)}"); g.e(f"v_pk_add_f32 {v(X+2,2)}, {v(X+2,2)}, {v(X+6,2)}")
        for r in range(4): g.e(f"v_cndmask_b32 v{X+r}, v{V_NEG}, v{X+r}, s[{S_SMV}:{S_SMV+1}]")
        m = X+4
        g.e(f"v_max3_f32 v{m}, v{X}, v{X+1}, v{X+2}"); g.e(f"v_max_f32 v{m}, v{m}, v{X+3}")
        for rot in (8,4,2,1):
            g.e("s_nop 1"); g.e(f"v_max_f32_dpp v{m}, v{m}, v{m} row_ror:{rot} row_mask:0xf bank_mask:0xf")
        g.e(f"v_mul_f32 v{m}, s{S_C}, v{m}")
        for r in range(4): g.e(f"v_fma_f32 v{X+r}, v{X+r}, s{S_C}, -v{m}")
        for r in range(4): g.e(f"v_exp_f32 v{X+r}, v{X+r}")
        g.e("s_nop 0")
        l = X+5
        g.e(f"v_add_f32 v{l}, v{X}, v{X+1}"); g.e(f"v_add_f32 v{l+1}, v{X+2}, v{X+3}"); g.e(f"v_add_f32 v{l}, v{l}, v{l+1}")
        for rot in (8,4,2,1):
            g.e("s_nop 1"); g.e(f"v_add_f32_dpp v{l}, v{l}, v{l} row_ror:{rot} row_mask:0xf bank_mask:0xf")
        g.e(f"v_rcp_f32 v{l}, v{l}"); g.e("s_nop 0")
        for r in range(4): g.e(f"v_mul_f32 v{X+r}, v{X+r}, v{l}")
        g.e(f"v_cvt_pk_bf16_f32 v{X+6}, v{X}, v{X+1}"); g.e(f"v_cvt_pk_bf16_f32 v{X+7}, v{X+2}, v{X+3}")
        g.e(f"s_mov_b64 exec, s[{S_SMS}:{S_SMS+1}]")
        g.e(f"buffer_store_dwordx2 v[{X+6}:{X+7}], v{V_PST}, {WS}, s{S_CUR} offen{LOC}")
        g.e("s_mov_b64 exec, -1")
        stamp(g, 1, stamps)
        g.e(f"s_cmp_eq_u32 s{S_STEP}, {NSTEP-1}"); g.e(f"s_cbranch_scc1 {LAST}")
        poll(g, P, lambda: (ldPm(), ldPx()), [H, H+4, H+8], tchk, cnt=68 if stamps else None)
        poll(g, P, ldY, [V_YF], tchk, pre_issued=True)
    else:
        g.e(f"ds_write_b128 v{V_SPW}, {v(fr,4)}")
        g.wait(lgkm=0); g.e("s_barrier")
        R = V_MF
        for wp in range(4): g.e(f"ds_read_b128 {v(R+4*wp,4)}, v{V_L16} offset:{LDS_SP + 3072*wp}")
        YA = V_MF + 16
        for wp in range(4):
            g.wait(lgkm=3-wp)
            for ctl in range(10):
                c = "0" if wp == 0 else v(YA+4*ctl, 4)
                g.e(f"v_mfma_f32_16x16x32_bf16 {v(YA+4*ctl,4)}, {v(R+4*wp,4)}, {wreg(40+ctl*4+wp)}, {c}")
        g.nop(7)
        YP = V_T; tmp = V_ACC
        for u in range(5):
            b0, b1 = YA+4*(2*u), YA+4*(2*u+1)
            g.e(f"v_cvt_pk_bf16_f32 v{tmp}, v{b0}, v{b0+1}"); g.e(f"v_cvt_pk_bf16_f32 v{tmp+1}, v{b0+2}, v{b0+3}")
            g.e(f"v_cvt_pk_bf16_f32 v{tmp+2}, v{b1}, v{b1+1}"); g.e(f"v_cvt_pk_bf16_f32 v{tmp+3}, v{b1+2}, v{b1+3}")
            yp = (YP+2*u) if u < 4 else V_KFR
            g.e(f"v_cndmask_b32 v{yp}, v{tmp+2}, v{tmp}, s[{S_GLO2}:{S_GLO2+1}]")
            g.e(f"v_cndmask_b32 v{yp+1}, v{tmp+3}, v{tmp+1}, s[{S_GLO2}:{S_GLO2+1}]")
            g.e(f"s_add_u32 s{S_T2}, s{S_CUR}, {u*2048}")
            g.e(f"buffer_store_dwordx2 v[{yp}:{yp+1}], v{V_YST}, {WS}, s{S_T2} offen{LOC}")
        stamp(g, 1, stamps)
        copies()
        g.e(f"s_cmp_eq_u32 s{S_STEP}, {NSTEP-1}"); g.e(f"s_cbranch_scc1 {LAST}")
        st_poison_own(S_PRV)
        poll(g, P, ldY, [V_YF, V_YF+4], tchk)
        poll(g, P, ldPm, [H+8], tchk, cnt=68 if stamps else None)
        poll(g, P, ldPx, [H, H+4], tchk)
    stamp(g, 2, stamps)
    g.c("---- stage 2")
    D1, D2, D3, D4 = V_ACC, V_ACC+4, V_ACC+8, V_ACC+12
    if two: g.e(f"v_mfma_f32_16x16x32_bf16 {v(D4,4)}, {v(V_YF+4,4)}, {v(H+8,4)}, 0")
    g.e(f"v_mfma_f32_16x16x32_bf16 {v(D1,4)}, {v(V_YF,4)}, {v(H+8,4)}, 0")
    g.e(f"v_mfma_f32_16x16x32_bf16 {v(D2,4)}, {v(V_BFR+4,4)}, {v(H,4)}, 0")
    g.e(f"v_mfma_f32_16x16x32_bf16 {v(D1,4)}, {v(V_BFR+0,4)}, {v(H,4)}, {v(D1,4)}")
    g.e(f"v_mfma_f32_16x16x32_bf16 {v(D2,4)}, {v(V_BFR+12,4)}, {v(H+4,4)}, {v(D2,4)}")
    if two: g.e(f"v_mfma_f32_16x16x32_bf16 {v(D3,4)}, {v(V_BFR+16,4)}, {v(H,4)}, 0")
    g.e(f"v_mfma_f32_16x16x32_bf16 {v(D1,4)}, {v(V_BFR+8,4)}, {v(H+4,4)}, {v(D1,4)}")
    if two:
        g.e(f"v_mfma_f32_16x16x32_bf16 {v(D3,4)}, {v(V_BFR+20,4)}, {v(H+4,4)}, {v(D3,4)}")
        g.nop(1)
        for r in range(4): g.e(f"v_cndmask_b32 v{D4+r}, 0, v{D4+r}, s[{S_GLO2}:{S_GLO2+1}]")
        g.nop(2)
    else:
        g.nop(8)
    for r in range(4):
        g.e(f"v_add_f32_dpp v{D1+r}, v{D2+r}, v{D1+r} row_ror:8 row_mask:0xf bank_mask:0xf")
    g.e(f"ds_write_b128 v{V_RPW}, {v(D1,4)}")
    if two:
        g.e(f"v_pk_add_f32 {v(D3,2)}, {v(D3,2)}, {v(D4,2)}"); g.e(f"v_pk_add_f32 {v(D3+2,2)}, {v(D3+2,2)}, {v(D4+2,2)}")
        g.e(f"ds_write_b128 v{V_RPW}, {v(D3,4)} offset:1024")
    g.wait(lgkm=0); g.e("s_barrier")
    sk = g.new(P+"mp")
    g.e(f"s_mov_b64 exec, s[{S_MPM}:{S_MPM+1}]"); g.e(f"s_cbranch_execz {sk}")
    R = V_MF
    for wp in range(4): g.e(f"ds_read_b128 {v(R+4*wp,4)}, v{V_RPR} offset:{2048*wp}")
    if two:
        w1d = g.new(P+"w1d")
        g.e(f"s_cmp_eq_u32 s{S_WAVE}, 1"); g.e(f"s_cbranch_scc0 {w1d}")
        for wp in range(4): g.e(f"ds_read_b128 {v(R+16+4*wp,4)}, v{V_RPR} offset:{2048*wp + 640}")
        g.wait(lgkm=0)
        for r in range(8): g.e(f"v_pk_add_f32 {v(R+2*r,2)}, {v(R+2*r,2)}, {v(R+16+2*r,2)}")
        g.lbl(w1d)
    g.wait(lgkm=0)
    g.e(f"v_pk_add_f32 {v(R,2)}, {v(R,2)}, {v(R+4,2)}"); g.e(f"v_pk_add_f32 {v(R+2,2)}, {v(R+2,2)}, {v(R+6,2)}")
    g.e(f"v_pk_add_f32 {v(R+8,2)}, {v(R+8,2)}, {v(R+12,2)}"); g.e(f"v_pk_add_f32 {v(R+10,2)}, {v(R+10,2)}, {v(R+14,2)}")
    g.e(f"v_pk_add_f32 {v(R,2)}, {v(R,2)}, {v(R+8,2)}"); g.e(f"v_pk_add_f32 {v(R+2,2)}, {v(R+2,2)}, {v(R+10,2)}")
    g.e(f"v_cvt_pk_bf16_f32 v{R+16}, v{R}, v{R+1}"); g.e(f"v_cvt_pk_bf16_f32 v{R+17}, v{R+2}, v{R+3}")
    g.e(f"buffer_store_dwordx2 v[{R+16}:{R+17}], v{V_MPR}, {WS}, s{S_NXT} offen sc1")
    g.e(f"buffer_store_dwordx2 v[{R+16}:{R+17}], v{V_MPL}, {WS}, s{S_NXT} offen{LOC}")
    g.lbl(sk); g.e("s_mov_b64 exec, -1")
    stamp(g, 3, stamps)
    g.c("---- window: non critical stores, then gather M(s+1) + prefetch")
    if isA:
        g.e(f"s_lshl_b32 s{S_CPK}, s{S_STEP}, 17"); g.e(f"s_add_u32 s{S_CPK}, s{S_CPK}, {hex(WS_KM)}")
    g.e(f"s_add_u32 s{S_KF}, s{S_KF}, {1<<18}"); g.e(f"s_add_u32 s{S_BF}, s{S_BF}, {32*40960}")
    g.e(f"s_add_u32 s{S_STEP}, s{S_STEP}, 1")
    if 'pre_gather' in hooks: hooks['pre_gather'](g)
    M5 = V_MF + 20
    def ldM():
        g.e(f"s_add_u32 s{S_T1}, s{S_NXT}, 4096")
        for q in range(4):
            g.e(f"buffer_load_dwordx4 {v(M5+4*q,4)}, v{V_MG}, {WS}, s{S_NXT} offen offset:{1024*q} sc1")
        g.e(f"buffer_load_dwordx4 {v(M5+16,4)}, v{V_MG}, {WS}, s{S_T1} offen sc1")
    if hooks.get('pubbar'): g.e("s_barrier")
    stamp(g, 4, stamps)
    poll(g, P, ldM, [M5+4*q for q in range(5)], tchk, cnt=69 if stamps else None)
    stamp(g, 5, stamps)
    for q in range(5): g.e(f"ds_write_b128 v{V_ML}, {v(M5+4*q,4)} offset:{2048*q}")
    g.e(f"s_mov_b32 s{S_T0}, s{S_CUR}"); g.e(f"s_mov_b32 s{S_CUR}, s{S_NXT}"); g.e(f"s_mov_b32 s{S_NXT}, s{S_N2}")
    g.e(f"s_mov_b32 s{S_N2}, s{S_PRV}"); g.e(f"s_mov_b32 s{S_PRV}, s{S_T0}")
    g.wait(lgkm=0); g.e("s_barrier")
    sk_n = hooks.get('skew', 1)
    for w in range(3):
        g.e(f"s_cmp_eq_u32 s{S_WAVE}, {w}"); g.e(f"s_cbranch_scc1 {LOOP}")
        if sk_n: g.nop(sk_n)
    g.e(f"s_branch {LOOP}")
    g.lbl(LAST)
    if isA: copies()
    if stamps:
        g.e(f"s_lshl_b32 s{S_T0}, s{S_X}, 5"); g.e(f"s_add_u32 s{S_T0}, s{S_T0}, s{S_J}"); g.e(f"s_lshl_b32 s{S_T0}, s{S_T0}, 8")
        g.e(f"s_lshl_b32 s{S_T1}, s{S_WAVE}, 6"); g.e(f"s_add_u32 s{S_T0}, s{S_T0}, s{S_T1}"); g.e(f"s_add_u32 s{S_T0}, s{S_T0}, {hex(WS_STAMP)}")
        g.e(f"v_mov_b32 v{V_MF+8}, 0")
        for i in range(8): g.e(f"v_mov_b32 v{V_MF+i}, s{62+i}")
        g.e("s_mov_b64 exec, 1")
        g.e(f"buffer_store_dwordx4 {v(V_MF,4)}, v{V_MF+8}, {WS}, s{S_T0} offen")
        g.e(f"buffer_store_dwordx4 {v(V_MF+4,4)}, v{V_MF+8}, {WS}, s{S_T0} offen offset:16")
        g.e("s_mov_b64 exec, -1")
    g.wait(vm=0)
    if 'end' in hooks: hooks['end'](g)
    g.e("s_endpgm")
    for t in g.tails: t()
    g.tails = []
```

```python
from asmlib import *
from layout import *
S_WS = 8
S_WAVE = 32
S_T0, S_T1, S_T2 = 54, 55, 56

def gen_wot(g, P, S_WO, S_SG):
    vD, vB0, vB1, vT0, vT1 = 10, 11, 12, 13, 14
    g.e(f"s_lshr_b32 s{S_T0}, s{S_WAVE}, 1"); g.e(f"s_lshl_b32 s{S_T0}, s{S_T0}, 3")
    g.e(f"v_lshlrev_b32 v{vT0}, 1, v3"); g.e(f"v_add_u32 v{vT0}, s{S_T0}, v{vT0}")
    g.e(f"v_xor_b32 v{vT0}, v{vT0}, v2"); g.e(f"v_lshlrev_b32 v{vT0}, 4, v{vT0}")
    g.e(f"s_lshl_b32 s{S_T0}, s{S_WAVE}, 2"); g.e(f"v_add_u32 v{vT1}, s{S_T0}, v3")
    g.e(f"v_mul_u32_u24 v{vD}, 1280, v{vT1}"); g.e(f"v_add_u32 v{vD}, v{vD}, v{vT0}")
    for dst, add in ((vB0, 0), (vB1, 1)):
        g.e(f"s_lshl_b32 s{S_T0}, s{S_WAVE}, 2"); g.e(f"s_add_u32 s{S_T0}, s{S_T0}, {2*add}")
        g.e(f"v_bfe_u32 v{vT0}, v1, 1, 1"); g.e(f"v_add_u32 v{vT0}, s{S_T0}, v{vT0}")
        g.e(f"v_lshrrev_b32 v{vT1}, 2, v2"); g.e(f"v_lshlrev_b32 v{vT1}, 1, v{vT1}")
        g.e(f"v_and_b32 v{dst}, 1, v3"); g.e(f"v_lshl_add_u32 v{vT1}, v{dst}, 3, v{vT1}")
        g.e(f"v_xor_b32 v{vT0}, v{vT0}, v{vT1}"); g.e(f"v_lshlrev_b32 v{vT0}, 4, v{vT0}")
        g.e(f"v_and_b32 v{vT1}, 1, v1"); g.e(f"v_lshl_add_u32 v{vT0}, v{vT1}, 3, v{vT0}")
        g.e(f"v_lshrrev_b32 v{vT1}, 2, v2"); g.e(f"v_lshl_add_u32 v{vT1}, v3, 3, v{vT1}")
        g.e(f"v_lshl_add_u32 v{dst}, v{vT1}, 8, v{vT0}")
    for c in range(4):
        for q in range(10):
            g.e(f"s_lshl_b32 s{S_T1}, s{S_WAVE}, 10"); g.e(f"s_add_u32 m0, s{S_T1}, {hex(c*40960 + q*4096)}")
            g.e(f"s_lshl_b32 s{S_T2}, s{S_SG}, 8"); g.e(f"s_add_u32 s{S_T2}, s{S_T2}, {hex((160*c+16*q)*1280)}")
            g.e(f"buffer_load_dwordx4 v{vD}, s[{S_WO}:{S_WO+3}], s{S_T2} offen lds")
    g.wait(vm=0); g.e("s_barrier")
    g.e(f"v_lshlrev_b32 v15, 4, v1")
    g.e(f"s_lshl_b32 s{S_T0}, s{S_SG}, 3"); g.e(f"s_lshl_b32 s{S_T1}, s{S_WAVE}, 1"); g.e(f"s_add_u32 s{S_T0}, s{S_T0}, s{S_T1}")
    g.e(f"s_mul_i32 s{S_T0}, s{S_T0}, 20480"); g.e(f"s_add_u32 s{S_T0}, s{S_T0}, {hex(WS_WOT)}")
    for t, vb in enumerate((vB0, vB1)):
        for c in range(4):
            g.e(f"v_add_u32 v{vT0}, {hex(c*40960)}, v{vb}")
            for kl in range(5):
                for half in range(2):
                    g.e(f"ds_read_b64_tr_b16 {v(32+4*kl+2*half,2)}, v{vT0} offset:{kl*8192+half*1024}")
            g.wait(lgkm=0)
            for kl in range(5):
                g.e(f"s_add_u32 s{S_T1}, s{S_T0}, {t*20480 + (5*c+kl)*1024}")
                g.e(f"buffer_store_dwordx4 {v(32+4*kl,4)}, v15, s[{S_WS}:{S_WS+3}], s{S_T1} offen sc1")
            g.wait(vm=0)
    g.e("s_barrier")

S_PS, S_PH = 30, 31
def gen_ptok_setup(g):
    g.e("v_lshlrev_b32 v10, 2, v3")
    for r in range(4):
        g.e(f"v_add_u32 v11, {r}, v10")
        g.e(f"v_cmp_le_u32 s[{60+2*r}:{61+2*r}], v11, v2")
    g.e("v_cmp_gt_u32 s[68:69], 2, v3")

def gen_ptok(g, P, wait_km=None):
    V_L16, V_NEG = 6, 7
    V_Q, V_K, V_KM = 32, 64, 96
    V_S = 112
    V_T = 140
    gen_ptok_setup(g)
    g.e(f"v_lshlrev_b32 v{V_L16}, 4, v1")
    g.e(f"v_mov_b32 v{V_NEG}, 0xff61b1e6")
    g.smov(57, 0x3e0293ee)
    g.e("v_lshlrev_b32 v8, 9, v2"); g.e("v_lshl_add_u32 v8, v3, 3, v8")
    first = True
    for hh in range(2):
        g.e(f"s_lshl_b32 s58, s{S_PH}, 3"); g.e(f"s_lshl_b32 s{S_T0}, s{S_WAVE}, 1"); g.e(f"s_add_u32 s58, s58, s{S_T0}")
        if hh: g.e("s_add_u32 s58, s58, 1")
        g.e(f"s_lshl_b32 s44, s{S_PS}, 5"); g.e(f"s_add_u32 s44, s44, s58")
        g.e(f"s_lshl_b32 s{S_T1}, s44, 13")
        g.e(f"s_add_u32 s{S_T2}, s{S_T1}, {hex(WS_QF)}")
        for wp in range(4):
            g.e(f"s_add_u32 s59, s{S_T2}, {wp*2048}")
            for tq in range(2):
                g.e(f"buffer_load_dwordx4 {v(V_Q+4*(wp*2+tq),4)}, v{V_L16}, s[{S_WS}:{S_WS+3}], s59 offen offset:{1024*tq} sc1")
        g.e(f"s_add_u32 s{S_T2}, s{S_T1}, {hex(WS_KF)}")
        for wp in range(4):
            g.e(f"s_add_u32 s59, s{S_T2}, {wp*2048}")
            for tt in range(2):
                g.e(f"buffer_load_dwordx4 {v(V_K+4*(wp*2+tt),4)}, v{V_L16}, s[{S_WS}:{S_WS+3}], s59 offen offset:{1024*tt} sc1")
        if first and wait_km: wait_km(g)
        first = False
        g.e(f"s_lshl_b32 s{S_T2}, s44, 12"); g.e(f"s_add_u32 s{S_T2}, s{S_T2}, {hex(WS_KM)}")
        for wp in range(4):
            g.e(f"buffer_load_dwordx4 {v(V_KM+4*wp,4)}, v{V_L16}, s[{S_WS}:{S_WS+3}], s{S_T2} offen offset:{1024*wp} sc1")
        g.wait(vm=4)
        for wp in range(4):
            for tq in range(2):
                for tt in range(tq+1):
                    d = v(V_S+12*tq+4+4*tt, 4)
                    g.e(f"v_mfma_f32_16x16x32_bf16 {d}, {v(V_K+4*(wp*2+tt),4)}, {v(V_Q+4*(wp*2+tq),4)}, {'0' if wp==0 else d}")
        g.wait(vm=0)
        for wp in range(4):
            for tq in range(2):
                d = v(V_S+12*tq, 4)
                g.e(f"v_mfma_f32_16x16x32_bf16 {d}, {v(V_KM+4*wp,4)}, {v(V_Q+4*(wp*2+tq),4)}, {'0' if wp==0 else d}")
        g.nop(8)
        for tq in range(2):
            S = V_S + 12*tq
            M, X0, X1 = S, S+4, S+8
            diag = X0 if tq == 0 else X1
            for r in range(4):
                g.e(f"v_cndmask_b32 v{M+r}, v{V_NEG}, v{M+r}, s[68:69]")
                g.e(f"v_cndmask_b32 v{diag+r}, v{V_NEG}, v{diag+r}, s[{60+2*r}:{61+2*r}]")
            vals = [M+r for r in range(4)] + [X0+r for r in range(4)] + ([X1+r for r in range(4)] if tq == 1 else [])
            m, m2 = V_T, V_T+1
            g.e(f"v_max3_f32 v{m}, v{vals[0]}, v{vals[1]}, v{vals[2]}")
            i = 3
            while i < len(vals):
                if i+1 < len(vals): g.e(f"v_max3_f32 v{m}, v{m}, v{vals[i]}, v{vals[i+1]}"); i += 2
                else: g.e(f"v_max_f32 v{m}, v{m}, v{vals[i]}"); i += 1
            def xred(reg, tmp, op):
                g.e(f"v_mov_b32 v{tmp}, v{reg}"); g.e("s_nop 1")
                g.e(f"v_permlane32_swap_b32 v{reg}, v{tmp}"); g.e("s_nop 0")
                g.e(f"{op} v{reg}, v{reg}, v{tmp}")
                g.e(f"v_mov_b32 v{tmp}, v{reg}"); g.e("s_nop 1")
                g.e(f"v_permlane16_swap_b32 v{reg}, v{tmp}"); g.e("s_nop 0")
                g.e(f"{op} v{reg}, v{reg}, v{tmp}")
            xred(m, m2, "v_max_f32")
            g.e(f"v_mul_f32 v{m}, s57, v{m}")
            for x in vals: g.e(f"v_fma_f32 v{x}, v{x}, s57, -v{m}")
            for x in vals: g.e(f"v_exp_f32 v{x}, v{x}")
            g.e("s_nop 0")
            l = V_T+2
            g.e(f"v_add_f32 v{l}, v{vals[0]}, v{vals[1]}")
            for x in vals[2:]: g.e(f"v_add_f32 v{l}, v{l}, v{x}")
            xred(l, m2, "v_add_f32")
            g.e(f"v_rcp_f32 v{l}, v{l}"); g.e("s_nop 0")
            for x in vals: g.e(f"v_mul_f32 v{x}, v{x}, v{l}")
            o = V_T+4
            g.e(f"v_cvt_pk_bf16_f32 v{o}, v{X0}, v{X0+1}"); g.e(f"v_cvt_pk_bf16_f32 v{o+1}, v{X0+2}, v{X0+3}")
            if tq == 1:
                g.e(f"v_cvt_pk_bf16_f32 v{o+2}, v{X1}, v{X1+1}"); g.e(f"v_cvt_pk_bf16_f32 v{o+3}, v{X1+2}, v{X1+3}")
            else:
                g.e(f"v_mov_b32 v{o+2}, 0"); g.e(f"v_mov_b32 v{o+3}, 0")
            g.e(f"v_cvt_pk_bf16_f32 v{o+4}, v{M}, v{M+1}"); g.e(f"v_cvt_pk_bf16_f32 v{o+5}, v{M+2}, v{M+3}")
            g.e(f"s_lshl_b32 s{S_T2}, s44, 11"); g.e(f"s_add_u32 s{S_T2}, s{S_T2}, {hex(WS_PTX + tq*1024)}")
            g.e(f"buffer_store_dwordx4 {v(o,4)}, v{V_L16}, s[{S_WS}:{S_WS+3}], s{S_T2} offen sc1")
            g.e(f"s_lshl_b32 s{S_T2}, s{S_PS}, 14"); g.e(f"s_lshl_b32 s59, s58, 4"); g.e(f"s_add_u32 s{S_T2}, s{S_T2}, s59")
            g.e(f"s_add_u32 s{S_T2}, s{S_T2}, {hex(WS_PTM + tq*8192)}")
            g.e("s_mov_b64 exec, s[68:69]")
            g.e(f"buffer_store_dwordx2 {v(o+4,2)}, v8, s[{S_WS}:{S_WS+3}], s{S_T2} offen sc1")
            g.e("s_mov_b64 exec, -1")
            g.e("s_nop 1")
    g.wait(vm=0)

S_GS, S_GC = 30, 31
def gen_gout(g, P, S_X, S_GW, S_OUT, wait_a=None, wait_p=None):
    V_L16, V_XO, V_PM, V_YO, V_GWO, V_OO = 6, 7, 8, 9, 10, 11
    ACC_B, ACC_A, ACC_G = 32, 72, 112
    V_B = 128
    g.e(f"v_lshlrev_b32 v{V_L16}, 4, v1")
    g.e(f"v_mul_u32_u24 v{V_XO}, 1280, v2"); g.e(f"v_lshl_add_u32 v{V_XO}, v3, 4, v{V_XO}")
    g.e(f"v_lshlrev_b32 v{V_GWO}, 4, v3")
    g.e(f"v_lshlrev_b32 v{V_PM}, 9, v2"); g.e(f"v_lshl_add_u32 v{V_PM}, v3, 4, v{V_PM}")
    g.e(f"v_mul_u32_u24 v{V_YO}, 10240, v3"); g.e(f"v_lshl_add_u32 v{V_YO}, v2, 4, v{V_YO}")
    if wait_a: wait_a(g)
    g.c("A part: kk = 5w..5w+4")
    g.e(f"s_mul_i32 s58, s{S_GS}, {32*1280}"); g.e(f"s_mul_i32 s{S_T0}, s{S_WAVE}, 320"); g.e(f"s_add_u32 s58, s58, s{S_T0}")
    g.e(f"s_mul_i32 s59, s{S_GC}, {5*20480}"); g.e(f"s_mul_i32 s{S_T0}, s{S_WAVE}, 5120"); g.e(f"s_add_u32 s59, s59, s{S_T0}"); g.e(f"s_add_u32 s59, s59, {hex(WS_WOT)}")
    g.e(f"s_mul_i32 s60, s{S_WAVE}, 320")
    for kl in range(5):
        B = V_B + 40*(kl % 2)
        for tq in range(2):
            g.e(f"s_add_u32 s{S_T0}, s58, {tq*16*1280 + kl*64}")
            g.e(f"s_add_u32 s{S_T1}, s{S_T0}, {hex(WS_OA)}")
            g.e(f"buffer_load_dwordx4 {v(B+4*tq,4)}, v{V_XO}, s[{S_WS}:{S_WS+3}], s{S_T1} offen sc1")
            g.e(f"buffer_load_dwordx4 {v(B+8+4*tq,4)}, v{V_XO}, s[{S_X}:{S_X+3}], s{S_T0} offen")
        g.e(f"buffer_load_dwordx4 {v(B+16,4)}, v{V_GWO}, s[{S_GW}:{S_GW+3}], s60 offen offset:{kl*64}")
        for ctl in range(5):
            g.e(f"s_add_u32 s{S_T0}, s59, {ctl*20480 + kl*1024}")
            g.e(f"buffer_load_dwordx4 {v(B+20+4*ctl,4)}, v{V_L16}, s[{S_WS}:{S_WS+3}], s{S_T0} offen sc1")
        g.wait(vm=0)
        for tq in range(2):
            d = v(ACC_G+4*tq,4)
            g.e(f"v_mfma_f32_16x16x32_bf16 {d}, {v(B+16,4)}, {v(B+8+4*tq,4)}, {'0' if kl==0 else d}")
            for ctl in range(5):
                d = v(ACC_A+4*(ctl*2+tq),4)
                g.e(f"v_mfma_f32_16x16x32_bf16 {d}, {v(B+20+4*ctl,4)}, {v(B+4*tq,4)}, {'0' if kl==0 else d}")
    if wait_p: wait_p(g)
    g.c("B part: heads 8w..8w+7")
    g.e(f"s_lshl_b32 s58, s{S_GS}, 14"); g.e(f"s_lshl_b32 s{S_T0}, s{S_WAVE}, 7"); g.e(f"s_add_u32 s58, s58, s{S_T0}"); g.e(f"s_add_u32 s58, s58, {hex(WS_PTM)}")
    g.e(f"s_mul_i32 s59, s{S_GS}, {32*10240}"); g.e(f"s_mul_i32 s{S_T0}, s{S_WAVE}, {8*10240}"); g.e(f"s_add_u32 s59, s59, s{S_T0}")
    g.e(f"s_mul_i32 s{S_T0}, s{S_GC}, {5*256}"); g.e(f"s_add_u32 s59, s59, s{S_T0}"); g.e(f"s_add_u32 s59, s59, {hex(WS_YT)}")
    for u in range(2):
        B = V_B + 28*u
        for tq in range(2):
            g.e(f"s_add_u32 s{S_T0}, s58, {tq*8192 + u*64}")
            g.e(f"buffer_load_dwordx4 {v(B+4*tq,4)}, v{V_PM}, s[{S_WS}:{S_WS+3}], s{S_T0} offen sc1")
        g.e(f"s_add_u32 s{S_T0}, s59, {u*4*10240}")
        for ctl in range(5):
            g.e(f"buffer_load_dwordx4 {v(B+8+4*ctl,4)}, v{V_YO}, s[{S_WS}:{S_WS+3}], s{S_T0} offen offset:{ctl*256} sc1")
    g.wait(vm=0)
    for u in range(2):
        B = V_B + 28*u
        for ctl in range(5):
            for tq in range(2):
                d = v(ACC_B+4*(ctl*2+tq),4)
                g.e(f"v_mfma_f32_16x16x32_bf16 {d}, {v(B+8+4*ctl,4)}, {v(B+4*tq,4)}, {'0' if u==0 else d}")
    g.e(f"s_lshl_b32 s58, s{S_GS}, 5"); g.e(f"s_lshl_b32 s{S_T0}, s{S_WAVE}, 3"); g.e(f"s_add_u32 s58, s58, s{S_T0}")
    g.e(f"s_mul_i32 s59, s58, 40960"); g.e(f"s_mul_i32 s{S_T0}, s{S_GC}, 5120"); g.e(f"s_add_u32 s59, s59, s{S_T0}"); g.e(f"s_add_u32 s59, s59, {hex(WS_BF)}")
    g.e(f"s_lshl_b32 s58, s58, 11"); g.e(f"s_add_u32 s58, s58, {hex(WS_PTX)}")
    def ld(hh):
        B = V_B + 28*(hh % 4)
        g.e(f"s_add_u32 s{S_T0}, s58, {hh*2048}")
        for tq in range(2):
            g.e(f"buffer_load_dwordx4 {v(B+4*tq,4)}, v{V_L16}, s[{S_WS}:{S_WS+3}], s{S_T0} offen offset:{1024*tq} sc1")
        for ctl in range(5):
            g.e(f"s_add_u32 s{S_T0}, s59, {hh*40960 + ctl*1024}")
            g.e(f"buffer_load_dwordx4 {v(B+8+4*ctl,4)}, v{V_L16}, s[{S_WS}:{S_WS+3}], s{S_T0} offen sc1")
    for hh in range(3): ld(hh)
    for hh in range(8):
        if hh + 3 < 8:
            ld(hh+3); g.wait(vm=21)
        else:
            g.wait(vm=7*(7-hh))
        B = V_B + 28*(hh % 4)
        for ctl in range(5):
            for tq in range(2):
                d = v(ACC_B+4*(ctl*2+tq),4)
                g.e(f"v_mfma_f32_16x16x32_bf16 {d}, {v(B+8+4*ctl,4)}, {v(B+4*tq,4)}, {d}")
    g.nop(8)
    g.c("cross-wave reduce: LDS [w][tile 22][lane*16]; tiles 0..9 b, 10..19 a, 20..21 gate")
    g.e(f"s_mul_i32 s{S_T0}, s{S_WAVE}, {22*1024}"); g.e(f"v_add_u32 v12, s{S_T0}, v{V_L16}")
    for t in range(10):
        g.e(f"ds_write_b128 v12, {v(ACC_B+4*t,4)} offset:{t*1024}")
        g.e(f"ds_write_b128 v12, {v(ACC_A+4*t,4)} offset:{(10+t)*1024}")
    for t in range(2): g.e(f"ds_write_b128 v12, {v(ACC_G+4*t,4)} offset:{(20+t)*1024}")
    g.wait(lgkm=0); g.e("s_barrier")
    g.e(f"v_mul_u32_u24 v{V_OO}, 1280, v2"); g.e(f"v_lshl_add_u32 v{V_OO}, v3, 3, v{V_OO}")
    for rnd in range(3):
        sk = g.new(P+"sk")
        g.e(f"s_add_u32 s58, s{S_WAVE}, {4*rnd}")
        if rnd == 2:
            g.e("s_cmp_ge_u32 s58, 10"); g.e(f"s_cbranch_scc1 {sk}")
        g.e("s_lshl_b32 s59, s58, 10"); g.e(f"v_add_u32 v12, s59, v{V_L16}")
        g.e("s_and_b32 s60, s58, 1"); g.e("s_lshl_b32 s61, s60, 10"); g.e(f"v_add_u32 v13, s61, v{V_L16}")
        R = V_B
        for wp in range(4):
            g.e(f"v_add_u32 v14, {wp*22*1024}, v12")
            g.e(f"ds_read_b128 {v(R+4*wp,4)}, v14")
            g.e(f"ds_read_b128 {v(R+16+4*wp,4)}, v14 offset:{10*1024}")
            g.e(f"v_add_u32 v15, {wp*22*1024 + 20*1024}, v13")
            g.e(f"ds_read_b32 v{R+32+wp}, v15")
        g.wait(lgkm=0)
        for base in (R, R+16):
            for r in range(4):
                g.e(f"v_add_f32 v{base+r}, v{base+r}, v{base+4+r}"); g.e(f"v_add_f32 v{base+8+r}, v{base+8+r}, v{base+12+r}")
            for r in range(4): g.e(f"v_add_f32 v{base+r}, v{base+r}, v{base+8+r}")
        G_ = R+32
        g.e(f"v_add_f32 v{G_}, v{G_}, v{G_+1}"); g.e(f"v_add_f32 v{G_+2}, v{G_+2}, v{G_+3}"); g.e(f"v_add_f32 v{G_}, v{G_}, v{G_+2}")
        g.e(f"v_mul_f32 v{G_}, 0xbfb8aa3b, v{G_}")
        g.e(f"v_exp_f32 v{G_}, v{G_}"); g.e("s_nop 0")
        g.e(f"v_add_f32 v{G_}, 1.0, v{G_}")
        g.e(f"v_rcp_f32 v{G_}, v{G_}"); g.e("s_nop 0")
        for r in range(4):
            g.e(f"v_sub_f32 v{R+16+r}, v{R+16+r}, v{R+r}")
            g.e(f"v_fma_f32 v{R+r}, v{R+16+r}, v{G_}, v{R+r}")
        g.e(f"v_cvt_pk_bf16_f32 v{R+4}, v{R}, v{R+1}"); g.e(f"v_cvt_pk_bf16_f32 v{R+5}, v{R+2}, v{R+3}")
        g.e(f"s_lshl_b32 s61, s{S_GS}, 1"); g.e("s_add_u32 s61, s61, s60"); g.e(f"s_mul_i32 s61, s61, {16*1280}")
        g.e(f"s_mul_i32 s59, s{S_GC}, 5"); g.e("s_lshr_b32 s60, s58, 1"); g.e("s_add_u32 s59, s59, s60"); g.e("s_lshl_b32 s59, s59, 5")
        g.e("s_add_u32 s61, s61, s59")
        g.e(f"buffer_store_dwordx2 {v(R+4,2)}, v{V_OO}, s[{S_OUT}:{S_OUT+3}], s61 offen")
        g.lbl(sk)
    g.wait(vm=0)
    g.e("s_barrier")
```

```python
from asmlib import *
from layout import *
F_PROG = 0
F_CHAIN = 128
F_ATT = 192
F_PCNT = 256
F_N = 320
DBG_QUEUE, DBG_AQ, DBG_WOT, DBG_ZERO = 10, 11, 12, 13
S_WS, S_DBG = 8, 20

def wg_wait(g, P, srd, soff_imm_or_sgpr, nlanes, stride4, target_setup, vt, sleep=2, bar=True, spin_sgpr=None):
    sk = g.new(P+"ww"); lp = g.new(P+"wl"); dn = g.new(P+"wd")
    g.e("s_cmp_eq_u32 s32, 0"); g.e(f"s_cbranch_scc0 {sk}")
    target_setup()
    g.e(f"v_min_u32 v{vt}, {nlanes-1}, v1")
    g.e(f"v_mul_u32_u24 v{vt}, {stride4}, v{vt}")
    g.smov(53, 1 << 18)
    g.lbl(lp)
    g.e(f"buffer_load_dword v{vt+1}, v{vt}, s[{srd}:{srd+3}], s{soff_imm_or_sgpr} offen sc1")
    g.wait(vm=0)
    g.e(f"v_cmp_gt_u32 vcc, s54, v{vt+1}")
    g.e(f"s_cbranch_vccz {dn}")
    if sleep: g.e(f"s_sleep {sleep}")
    g.e("s_sub_u32 s43, s43, 1"); g.e(f"s_cbranch_scc0 {lp}")
    g.lbl(dn); g.lbl(sk)
    if bar: g.e("s_barrier")

def wg_signal_add(g, P, srd, soff_sgpr, vt):
    sk = g.new(P+"sg")
    g.wait(vm=0); g.e("s_barrier")
    g.e("s_cmp_eq_u32 s32, 0"); g.e(f"s_cbranch_scc0 {sk}")
    g.e(f"v_mov_b32 v{vt}, 1"); g.e(f"v_mov_b32 v{vt+1}, 0")
    g.e("s_mov_b64 exec, 1")
    g.e(f"buffer_atomic_add v{vt}, v{vt+1}, s[{srd}:{srd+3}], s{soff_sgpr} offen sc1")
    g.e("s_mov_b64 exec, -1")
    g.lbl(sk)

def store_word(g, srd, soff_sgpr, val_sgpr, vt):
    g.e(f"v_mov_b32 v{vt}, s{val_sgpr}"); g.e(f"v_mov_b32 v{vt+1}, 0")
    g.e("s_mov_b64 exec, 1")
    g.e(f"buffer_store_dword v{vt}, v{vt+1}, s[{srd}:{srd+3}], s{soff_sgpr} offen sc1")
    g.e("s_mov_b64 exec, -1")

def ticket(g, P, dbg_index, dst, lds_ok=True):
    lab = g.new(P+"tk")
    g.e("s_cmp_eq_u32 s32, 0"); g.e(f"s_cbranch_scc0 {lab}")
    if callable(dbg_index): dbg_index()
    else: g.smov(54, dbg_index*4)
    g.e("v_mov_b32 v4, 1"); g.e("v_mov_b32 v5, s54"); g.e("v_mov_b32 v6, 0")
    g.e("s_mov_b64 exec, 1")
    g.e(f"buffer_atomic_add v4, v5, s[{S_DBG}:{S_DBG+3}], 0 offen sc0")
    g.wait(vm=0); g.e("ds_write_b32 v6, v4"); g.wait(lgkm=0)
    g.e("s_mov_b64 exec, -1")
    g.lbl(lab)
    g.e("s_barrier")
    g.e("v_mov_b32 v6, 0"); g.e("ds_read_b32 v4, v6"); g.wait(lgkm=0)
    g.e(f"v_readfirstlane_b32 s{dst}, v4")
    g.e("s_barrier")
```

```python
import sys, os
from asmlib import *
from wload import *
from layout import *
from sync import *
import producer, aqkv, aattn, final
import chain4 as chain
HK = eval(os.environ.get('HK', '{}'))
fast = True
g = G()
KN = KNAME + "_kernel"
kernel_head(g, KN)
PX, PWQKV, PWO, PMEM, PWQ, PWK, PWV, PWOB, PGW, POUT, PDBG, PWS = range(76, 100, 2)
g.e("s_cmp_ge_u32 s2, 256"); g.e("s_cbranch_scc1 f_end")
g.e(f"s_load_dwordx4 s[{PX}:{PX+3}], s[0:1], 0")
g.e(f"s_load_dwordx2 s[{PWO}:{PWO+1}], s[0:1], 16")
g.e(f"s_load_dwordx2 s[{PMEM}:{PMEM+1}], s[0:1], 32")
g.e(f"s_load_dwordx4 s[{PWQ}:{PWQ+3}], s[0:1], 40")
g.e(f"s_load_dwordx4 s[{PWV}:{PWV+3}], s[0:1], 56")
g.e(f"s_load_dwordx4 s[{PGW}:{PGW+3}], s[0:1], 80")
g.e(f"s_load_dwordx4 s[{PDBG}:{PDBG+3}], s[0:1], 96")
g.e("v_and_b32 v1, 63, v0"); g.e("v_and_b32 v2, 15, v0"); g.e("v_bfe_u32 v3, v0, 4, 2")
g.e("v_lshrrev_b32 v4, 6, v0"); g.e("s_nop 0"); g.e("v_readfirstlane_b32 s32, v4")
g.e("s_getreg_b32 s28, hwreg(HW_REG_XCC_ID)"); g.e("s_and_b32 s28, s28, 15")
g.wait(lgkm=0)
g.srd(S_WS, PWS, 268435456); g.srd(S_DBG, PDBG, 256)
ticket(g, "F", lambda: g.e("s_lshl_b32 s54, s28, 2"), 29)
g.e("s_cmp_ge_u32 s28, 2"); g.e("s_cbranch_scc1 f_work")
g.e("s_cmp_ge_u32 s29, 32"); g.e("s_cbranch_scc1 f_work")
g.c("==== chain role")
g.srd(chain.S_MEM0, PMEM, 10240)
g.e(f"s_lshr_b32 s{chain.S_HL}, s29, 1")
g.e(f"s_lshl_b32 s{S_H}, s28, 4"); g.e(f"s_add_u32 s{S_H}, s{S_H}, s{chain.S_HL}")
S_RDY = 74
S_CPO = 75
def chain_hooks(typ):
    isA = typ == 'A'
    def ensure(g, need_sgpr_setup):
        ok = g.new("rdy"); lp = g.new("rdl")
        g.e(f"s_cmp_lt_u32 s{chain.S_STEP}, s{S_RDY}"); g.e(f"s_cbranch_scc1 {ok}")
        def tail(): pass
        g.lbl(lp)
        T = chain.V_T + 20
        g.e(f"s_and_b32 s54, s{chain.S_STEP}, 1")
        g.e(f"buffer_load_dword v{T}, v30, s[{S_WS}:{S_WS+3}], 0 offen sc1")
        g.wait(vm=0)
        g.e(f"v_lshl_add_u32 v{T}, v{T}, 1, v31")
        for rot in (1, 2, 4, 8):
            g.e("s_nop 1"); g.e(f"v_min_u32_dpp v{T}, v{T}, v{T} row_ror:{rot} row_mask:0xf bank_mask:0xf")
        g.e("s_nop 1")
        g.e(f"v_readlane_b32 s54, v{T}, 0"); g.e(f"v_readlane_b32 s55, v{T}, 16"); g.e(f"v_readlane_b32 s56, v{T}, 32"); g.e(f"v_readlane_b32 s{S_RDY}, v{T}, 48")
        g.e("s_nop 3")
        g.e("s_min_u32 s54, s54, s55"); g.e(f"s_min_u32 s56, s56, s{S_RDY}"); g.e(f"s_min_u32 s{S_RDY}, s54, s56")
        g.e(f"s_cmp_lt_u32 s{chain.S_STEP}, s{S_RDY}"); g.e(f"s_cbranch_scc1 {ok}")
        g.e("s_sleep 1")
        g.e(f"s_sub_u32 s{chain.S_SPIN}, s{chain.S_SPIN}, 1"); g.e(f"s_cbranch_scc0 {lp}")
        g.e(f"s_mov_b32 s{chain.S_SPIN}, 0"); g.smov(S_RDY, 64)
        g.lbl(ok)
    def pre_loop(g):
        g.e(f"s_lshl_b32 s54, s28, 4")
        g.e("v_and_b32 v31, 1, v3")
        g.e("v_add_u32 v30, s54, v2")
        g.e(f"v_mov_b32 v29, s{S_H}")
        g.e("v_cmp_gt_u32 vcc, 2, v3"); g.e("s_nop 1")
        g.e("v_cndmask_b32 v30, v29, v30, vcc")
        g.e("v_cndmask_b32 v29, 0, 64, vcc") if False else None
        g.e("v_mov_b32 v29, 0"); g.e("v_mov_b32 v28, 64"); g.e("v_cndmask_b32 v29, v29, v28, vcc")
        g.e("v_add_u32 v30, v30, v29")
        g.e("v_lshl_add_u32 v30, v31, 5, v30")
        g.e(f"v_lshlrev_b32 v30, 2, v30"); g.e(f"v_add_u32 v30, {hex(WS_FLAGS + F_PROG*4)}, v30")
        g.smov(S_RDY, 0)
        g.e(f"s_lshl_b32 s{S_CPO}, s{S_H}, 2"); g.e(f"s_add_u32 s{S_CPO}, s{S_CPO}, {hex(WS_FLAGS + (F_CHAIN + (0 if isA else 32))*4)}")
        g.smov(55, DBG_ZERO*4)
        wg_wait(g, "CZ", S_DBG, 55, 1, 4, lambda: g.smov(54, 1), chain.V_T, sleep=1)
        g.smov(chain.S_STEP, 0)
        ensure(g, None)
    def pre_gather(g):
        sk = g.new("cp")
        g.e("s_cmp_eq_u32 s32, 3"); g.e(f"s_cbranch_scc0 {sk}")
        if isA: g.e(f"s_sub_u32 s54, s{chain.S_STEP}, 1")
        else: g.e(f"s_mov_b32 s54, s{chain.S_STEP}")
        store_word(g, S_WS, S_CPO, 54, chain.V_T + 21)
        g.lbl(sk)
        ensure(g, None)
    def end(g):
        g.e("s_barrier")
        sk = g.new("ce")
        g.e("s_cmp_eq_u32 s32, 0"); g.e(f"s_cbranch_scc0 {sk}")
        g.smov(54, 64); store_word(g, S_WS, S_CPO, 54, chain.V_T + 21); g.wait(vm=0)
        g.lbl(sk)
    h = dict(pre_loop=pre_loop, pre_gather=pre_gather, end=end, pubbar=1, every=4, skew=2)
    h.update(HK)
    return h
g.e("s_and_b32 s54, s29, 1"); g.e("s_cmp_eq_u32 s54, 1"); g.e("s_cbranch_scc1 f_cB")
g.srd(S_W1, PWQ, 640*4096*2); g.srd(S_W2, PWK, 640*4096*2)
chain.gen_chain(g, 'A', fast, False, chain_hooks('A'))
g.lbl("f_cB")
g.srd(S_W1, PWV, 640*4096*2); g.srd(S_W2, PWOB, 640*4096*2)
chain.gen_chain(g, 'B', fast, False, chain_hooks('B'))
g.lbl("f_work")
ticket(g, "F", DBG_WORK, 40)
g.e("s_cmp_ge_u32 s40, 128"); g.e("s_cbranch_scc1 f_aq")
g.c("==== producer role")
g.srd(24, PX, 2048*1280)
g.e("s_and_b32 s33, s40, 1"); g.smov(35, 2); g.e("s_lshr_b32 s30, s40, 2")
g.e("s_bfe_u32 s54, s40, 0x10001"); g.e("s_lshl_b32 s54, s54, 6"); g.e("s_lshl_b32 s55, s33, 5"); g.e("s_add_u32 s54, s54, s55"); g.e("s_add_u32 s54, s54, s30")
g.e("s_lshl_b32 s41, s54, 2"); g.e(f"s_add_u32 s41, s41, {hex(WS_FLAGS + F_PROG*4)}")
g.smov(42, 0)
def prod_signal(g):
    g.wait(vm=0); g.e("s_barrier")
    g.e("s_add_u32 s42, s42, 1")
    sk = g.new("ps")
    g.e("s_cmp_eq_u32 s32, 0"); g.e(f"s_cbranch_scc0 {sk}")
    store_word(g, S_WS, 41, 42, 170)
    g.lbl(sk)
def zero_wait(g):
    g.smov(55, DBG_ZERO*4)
    wg_wait(g, "PZ", S_DBG, 55, 1, 4, lambda: g.smov(54, 1), 170, sleep=1)
g.e("s_bitcmp1_b32 s40, 1"); g.e("s_cbranch_scc1 f_pB")
g.srd(S_W1, PWQ, 640*4096*2); g.srd(S_W2, PWK, 640*4096*2)
producer.gen_producer(g, 'A', "PA", signal=prod_signal, pre=zero_wait)
g.e("s_branch f_queue")
g.lbl("f_pB")
g.srd(S_W1, PWV, 640*4096*2); g.srd(S_W2, PWOB, 640*4096*2)
producer.gen_producer(g, 'B', "PB", signal=prod_signal, pre=zero_wait)
g.e("s_branch f_queue")
g.lbl("f_aq")
g.c("==== A-branch QKV role (+zero flags, +wot)")
zs = g.new("zs")
g.e("s_cmp_eq_u32 s40, 128"); g.e(f"s_cbranch_scc0 {zs}")
g.e("v_lshlrev_b32 v4, 3, v0"); g.e("v_mov_b32 v6, 0"); g.e("v_mov_b32 v7, 0")
g.smov(54, WS_FLAGS)
g.e(f"buffer_store_dwordx2 v[6:7], v4, s[{S_WS}:{S_WS+3}], s54 offen sc1")
g.wait(vm=0); g.e("s_barrier")
z2 = g.new("z2")
g.e("s_cmp_eq_u32 s32, 0"); g.e(f"s_cbranch_scc0 {z2}")
g.smov(54, DBG_ZERO*4); g.smov(55, 1); store_word(g, S_DBG, 54, 55, 4)
g.lbl(z2)
g.lbl(zs)
ws_ = g.new("wt")
g.e("s_sub_u32 s30, s40, 129"); g.e("s_cmp_ge_u32 s30, 5"); g.e(f"s_cbranch_scc1 {ws_}")
g.srd(12, PWO, 640*1280)
final.gen_wot(g, "WT", 12, 30)
g.smov(55, DBG_WOT*4); wg_signal_add(g, "WT", S_DBG, 55, 4)
g.lbl(ws_)
g.srd(24, PX, 2048*1280); g.srd(12, PWQKV, 640*3840)
g.e("s_sub_u32 s54, s40, 128"); g.e("s_lshr_b32 s30, s54, 2"); g.e("s_and_b32 s33, s54, 3"); g.e("s_lshl_b32 s33, s33, 4"); g.e("s_add_u32 s34, s33, 16")
aqkv.gen_aqkv(g, "AQ")
g.smov(55, DBG_AQ*4); wg_signal_add(g, "AQ", S_DBG, 55, 4)
g.lbl("f_queue")
ticket(g, "Q", DBG_QUEUE, 40)
g.e("s_cmp_ge_u32 s40, 256"); g.e("s_cbranch_scc1 f_fin")
g.c("==== attention item")
g.smov(55, DBG_AQ*4); wg_wait(g, "AW", S_DBG, 55, 1, 4, lambda: g.smov(54, 64), 4, sleep=4)
g.e("s_lshr_b32 s30, s40, 3"); g.e("s_and_b32 s31, s40, 7")
aattn.gen_aattn(g, "AT")
g.e("s_lshl_b32 s55, s31, 2"); g.e(f"s_add_u32 s55, s55, {hex(WS_FLAGS + F_ATT*4)}")
wg_signal_add(g, "AT", S_WS, 55, 4)
g.e("s_branch f_queue")
g.lbl("f_fin")
g.e("s_sub_u32 s40, s40, 256")
g.e(f"s_cmp_ge_u32 s40, {64*12}"); g.e("s_cbranch_scc1 f_end")
g.smov(54, 0x15555556); g.e("s_mul_hi_u32 s30, s40, s54")
g.e("s_mul_i32 s54, s30, 12"); g.e("s_sub_u32 s31, s40, s54")
g.e("s_cmp_ge_u32 s31, 4"); g.e("s_cbranch_scc1 f_gout")
g.c("==== P item (s=s30, hg=s31)")
g.e("s_and_b32 s55, s30, 1"); g.e("s_lshl_b32 s55, s55, 5"); g.e("s_lshl_b32 s56, s31, 3"); g.e("s_add_u32 s55, s55, s56"); g.e("s_lshl_b32 s55, s55, 2")
g.e(f"s_add_u32 s55, s55, {hex(WS_FLAGS + F_PROG*4)}")
wg_wait(g, "PW", S_WS, 55, 8, 4, lambda: (g.e("s_lshr_b32 s54, s30, 1"), g.e("s_add_u32 s54, s54, 1")), 4, sleep=8)
def wait_km(g):
    g.e("s_lshl_b32 s55, s31, 5"); g.e(f"s_add_u32 s55, s55, {hex(WS_FLAGS + F_CHAIN*4)}")
    wg_wait(g, "PK", S_WS, 55, 8, 4, lambda: g.e("s_add_u32 s54, s30, 1"), 12, sleep=4)
final.gen_ptok(g, "PT", wait_km=wait_km)
g.e("s_lshl_b32 s55, s30, 2"); g.e(f"s_add_u32 s55, s55, {hex(WS_FLAGS + F_PCNT*4)}")
wg_signal_add(g, "PT", S_WS, 55, 4)
g.e("s_branch f_queue")
g.lbl("f_gout")
g.c("==== G item (s=s30, cg=s31-4)")
g.e("s_sub_u32 s31, s31, 4")
g.srd(24, PX, 2048*1280); g.srd(12, PGW, 1280); g.srd(16, POUT, 2048*1280)
def wait_a(g):
    g.smov(55, DBG_WOT*4); wg_wait(g, "GW", S_DBG, 55, 1, 4, lambda: g.smov(54, 5), 12, sleep=4)
    g.e("s_lshr_b32 s55, s30, 3"); g.e("s_lshl_b32 s55, s55, 2"); g.e(f"s_add_u32 s55, s55, {hex(WS_FLAGS + F_ATT*4)}")
    wg_wait(g, "GA", S_WS, 55, 1, 4, lambda: g.smov(54, 32), 12, sleep=8)
def wait_p(g):
    g.e("s_and_b32 s55, s30, 1"); g.e("s_lshl_b32 s55, s55, 7"); g.e(f"s_add_u32 s55, s55, {hex(WS_FLAGS + (F_PROG+64)*4)}")
    wg_wait(g, "GB", S_WS, 55, 32, 4, lambda: (g.e("s_lshr_b32 s54, s30, 1"), g.e("s_add_u32 s54, s54, 1")), 12, sleep=8)
    g.smov(55, WS_FLAGS + (F_CHAIN+32)*4)
    wg_wait(g, "GY", S_WS, 55, 32, 4, lambda: g.e("s_add_u32 s54, s30, 1"), 12, sleep=4)
    g.e("s_lshl_b32 s55, s30, 2"); g.e(f"s_add_u32 s55, s55, {hex(WS_FLAGS + F_PCNT*4)}")
    wg_wait(g, "GP", S_WS, 55, 1, 4, lambda: g.smov(54, 4), 12, sleep=2)
final.gen_gout(g, "GO", 24, 12, 16, wait_a=wait_a, wait_p=wait_p)
g.e("s_branch f_queue")
g.lbl("f_end"); g.e("s_endpgm")
hdr = HEADER + "; @launch grid=(256,1,1) block=(256,1,1) lds=163840\n"
out = hdr + '.amdgcn_target "amdgcn-amd-amdhsa--gfx950"\n.text\n' + g.text() + f""".section .rodata,"a"
.p2align 6
.amdhsa_kernel {KN}
  .amdhsa_next_free_vgpr 512
  .amdhsa_next_free_sgpr 100
  .amdhsa_accum_offset 256
  .amdhsa_group_segment_fixed_size 0
  .amdhsa_kernarg_size 112
  .amdhsa_user_sgpr_count 2
  .amdhsa_user_sgpr_kernarg_segment_ptr 1
  .amdhsa_system_sgpr_workgroup_id_x 1
.end_amdhsa_kernel
"""
open(sys.argv[1] if len(sys.argv) > 1 else "fused.s", "w").write(out)
```

```python
import sys, os
from asmlib import *
from wload import *
from layout import *
from sync import *
import producer, aqkv, aattn, final
import importlib
chain = importlib.import_module(os.environ.get('CHAIN','chain10'))
HK = eval(os.environ.get('HK', '{}'))
fast = True
TL = HK.pop('tl', 0)
g = G()
def tl(g, idx, wave0_only=True):
    if not TL: return
    sk = g.new("tl")
    g.e("s_cmp_eq_u32 s32, 0"); g.e(f"s_cbranch_scc0 {sk}")
    g.e("s_memrealtime s[100:101]"); g.wait(lgkm=0)
    g.e("v_mov_b32 v250, s100") if False else None
    g.e("s_lshl_b32 s101, s2, 6"); g.e(f"s_add_u32 s101, s101, {hex(WS_STAMP + 0x40000 + idx*4)}")
    g.e("v_mov_b32 v190, s100"); g.e("v_mov_b32 v191, 0")
    g.e("s_mov_b64 exec, 1")
    g.e(f"buffer_store_dword v190, v191, s[{S_WS}:{S_WS+3}], s101 offen")
    g.e("s_mov_b64 exec, -1")
    g.lbl(sk)
KN = KNAME + "_kernel"
kernel_head(g, KN)
PX, PWQKV, PWO, PMEM, PWQ, PWK, PWV, PWOB, PGW, POUT, PDBG, PWS = range(76, 100, 2)
g.e("s_cmp_ge_u32 s2, 256"); g.e("s_cbranch_scc1 f_end")
g.e(f"s_load_dwordx4 s[{PX}:{PX+3}], s[0:1], 0")
g.e(f"s_load_dwordx2 s[{PWO}:{PWO+1}], s[0:1], 16")
g.e(f"s_load_dwordx2 s[{PMEM}:{PMEM+1}], s[0:1], 32")
g.e(f"s_load_dwordx4 s[{PWQ}:{PWQ+3}], s[0:1], 40")
g.e(f"s_load_dwordx4 s[{PWV}:{PWV+3}], s[0:1], 56")
g.e(f"s_load_dwordx4 s[{PGW}:{PGW+3}], s[0:1], 80")
g.e(f"s_load_dwordx4 s[{PDBG}:{PDBG+3}], s[0:1], 96")
g.e("v_and_b32 v1, 63, v0"); g.e("v_and_b32 v2, 15, v0"); g.e("v_bfe_u32 v3, v0, 4, 2")
g.e("v_lshrrev_b32 v4, 6, v0"); g.e("s_nop 0"); g.e("v_readfirstlane_b32 s32, v4")
g.e("s_getreg_b32 s28, hwreg(HW_REG_XCC_ID)"); g.e("s_and_b32 s28, s28, 15")
g.wait(lgkm=0)
g.srd(S_WS, PWS, 268435456); g.srd(S_DBG, PDBG, 256)
tl(g, 0)
ticket(g, "F", lambda: g.e("s_lshl_b32 s54, s28, 2"), 29)
g.e("s_cmp_ge_u32 s28, 2"); g.e("s_cbranch_scc1 f_work")
g.e("s_cmp_ge_u32 s29, 32"); g.e("s_cbranch_scc1 f_work")
g.c("==== chain role")
g.srd(chain.S_MEM0, PMEM, 10240)
g.e(f"s_lshr_b32 s{chain.S_HL}, s29, 1")
g.e(f"s_lshl_b32 s{S_H}, s28, 4"); g.e(f"s_add_u32 s{S_H}, s{S_H}, s{chain.S_HL}")
S_RDY = 74
S_CPO = 75
def chain_hooks(typ):
    isA = typ == 'A'
    def ensure(g, need_sgpr_setup):
        ok = g.new("rdy"); lp = g.new("rdl")
        g.e(f"s_cmp_lt_u32 s{chain.S_STEP}, s{S_RDY}"); g.e(f"s_cbranch_scc1 {ok}")
        def tail(): pass
        g.lbl(lp)
        T = chain.V_T + 20
        g.e(f"s_and_b32 s54, s{chain.S_STEP}, 1")
        g.e(f"buffer_load_dword v{T}, v30, s[{S_WS}:{S_WS+3}], 0 offen sc1")
        g.wait(vm=0)
        g.e(f"v_lshl_add_u32 v{T}, v{T}, 1, v31")
        for rot in (1, 2, 4, 8):
            g.e("s_nop 1"); g.e(f"v_min_u32_dpp v{T}, v{T}, v{T} row_ror:{rot} row_mask:0xf bank_mask:0xf")
        g.e("s_nop 1")
        g.e(f"v_readlane_b32 s54, v{T}, 0"); g.e(f"v_readlane_b32 s55, v{T}, 16"); g.e(f"v_readlane_b32 s56, v{T}, 32"); g.e(f"v_readlane_b32 s{S_RDY}, v{T}, 48")
        g.e("s_nop 3")
        g.e("s_min_u32 s54, s54, s55"); g.e(f"s_min_u32 s56, s56, s{S_RDY}"); g.e(f"s_min_u32 s{S_RDY}, s54, s56")
        g.e(f"s_cmp_lt_u32 s{chain.S_STEP}, s{S_RDY}"); g.e(f"s_cbranch_scc1 {ok}")
        g.e("s_sleep 1")
        g.e(f"s_sub_u32 s{chain.S_SPIN}, s{chain.S_SPIN}, 1"); g.e(f"s_cbranch_scc0 {lp}")
        g.e(f"s_mov_b32 s{chain.S_SPIN}, 0"); g.smov(S_RDY, 64)
        g.lbl(ok)
    def pre_loop(g):
        T = chain.V_T
        g.e(f"s_lshl_b32 s54, s28, 4")
        g.e("v_and_b32 v31, 1, v3")
        g.e("v_add_u32 v30, s54, v2")
        g.e(f"v_mov_b32 v{T}, s{S_H}")
        g.e("v_cmp_gt_u32 vcc, 2, v3"); g.e("s_nop 1")
        g.e(f"v_cndmask_b32 v30, v{T}, v30, vcc")
        g.e(f"v_mov_b32 v{T}, 0"); g.e(f"v_mov_b32 v{T+1}, 64"); g.e(f"v_cndmask_b32 v{T}, v{T}, v{T+1}, vcc")
        g.e(f"v_add_u32 v30, v30, v{T}")
        g.e("v_lshl_add_u32 v30, v31, 5, v30")
        g.e(f"v_lshlrev_b32 v30, 2, v30"); g.e(f"v_add_u32 v30, {hex(WS_FLAGS + F_PROG*4)}, v30")
        g.smov(S_RDY, 0)
        g.e(f"s_lshl_b32 s{S_CPO}, s{S_H}, 2"); g.e(f"s_add_u32 s{S_CPO}, s{S_CPO}, {hex(WS_FLAGS + F_CHAIN*4)}")
        g.smov(55, DBG_ZERO*4)
        wg_wait(g, "CZ", S_DBG, 55, 1, 4, lambda: g.smov(54, 1), chain.V_T, sleep=1)
        g.smov(chain.S_STEP, 0)
        tl(g, 1)
        ensure(g, None)
        tl(g, 2)
    def pre_gather(g):
        if isA:
            sk = g.new("cp")
            g.e("s_cmp_eq_u32 s32, 2"); g.e(f"s_cbranch_scc0 {sk}")
            g.e(f"s_sub_u32 s54, s{chain.S_STEP}, 1")
            store_word(g, S_WS, S_CPO, 54, chain.V_T + 21)
            g.lbl(sk)
        ensure(g, None)
    def end(g):
        tl(g, 3)
        g.e("s_barrier")
        sk = g.new("ce")
        g.e("s_cmp_eq_u32 s32, 0"); g.e(f"s_cbranch_scc0 {sk}")
        if not isA: g.e(f"s_add_u32 s{S_CPO}, s{S_CPO}, 128")
        g.smov(54, 64); store_word(g, S_WS, S_CPO, 54, chain.V_T + 21); g.wait(vm=0)
        g.lbl(sk)
    h = dict(pre_loop=pre_loop, pre_gather=pre_gather, end=end)
    h.update(HK)
    return h
g.e("s_and_b32 s54, s29, 1"); g.e("s_cmp_eq_u32 s54, 1"); g.e("s_cbranch_scc1 f_cB")
g.srd(S_W1, PWQ, 640*4096*2); g.srd(S_W2, PWK, 640*4096*2)
chain.gen_chain(g, 'A', fast, False, chain_hooks('A'))
g.lbl("f_cB")
g.srd(S_W1, PWV, 640*4096*2); g.srd(S_W2, PWOB, 640*4096*2)
chain.gen_chain(g, 'B', fast, False, chain_hooks('B'))
g.lbl("f_work")
ticket(g, "F", DBG_WORK, 40)
g.e("s_cmp_ge_u32 s40, 128"); g.e("s_cbranch_scc1 f_aq")
g.c("==== producer role")
g.srd(24, PX, 2048*1280)
g.e("s_and_b32 s33, s40, 1"); g.smov(35, 2); g.e("s_lshr_b32 s30, s40, 2")
g.e("s_bfe_u32 s54, s40, 0x10001"); g.e("s_lshl_b32 s54, s54, 6"); g.e("s_lshl_b32 s55, s33, 5"); g.e("s_add_u32 s54, s54, s55"); g.e("s_add_u32 s54, s54, s30")
g.e("s_lshl_b32 s41, s54, 2"); g.e(f"s_add_u32 s41, s41, {hex(WS_FLAGS + F_PROG*4)}")
g.smov(42, 0)
def prod_signal(g):
    g.wait(vm=0); g.e("s_barrier")
    g.e("s_add_u32 s42, s42, 1")
    sk = g.new("ps")
    g.e("s_cmp_eq_u32 s32, 0"); g.e(f"s_cbranch_scc0 {sk}")
    store_word(g, S_WS, 41, 42, 170)
    g.lbl(sk)
def zero_wait(g):
    tl(g, 1)
    g.smov(55, DBG_ZERO*4)
    wg_wait(g, "PZ", S_DBG, 55, 1, 4, lambda: g.smov(54, 1), 170, sleep=1)
g.e("s_bitcmp1_b32 s40, 1"); g.e("s_cbranch_scc1 f_pB")
g.srd(S_W1, PWQ, 640*4096*2); g.srd(S_W2, PWK, 640*4096*2)
producer.gen_producer(g, 'A', "PA", signal=prod_signal, pre=zero_wait)
tl(g, 3)
g.e("s_branch f_queue")
g.lbl("f_pB")
g.srd(S_W1, PWV, 640*4096*2); g.srd(S_W2, PWOB, 640*4096*2)
producer.gen_producer(g, 'B', "PB", signal=prod_signal, pre=zero_wait)
tl(g, 3)
g.e("s_branch f_queue")
g.lbl("f_aq")
g.c("==== A-branch QKV role (+zero flags, +wot)")
zs = g.new("zs")
g.e("s_cmp_eq_u32 s40, 128"); g.e(f"s_cbranch_scc0 {zs}")
g.e("v_lshlrev_b32 v4, 3, v0"); g.e("v_mov_b32 v6, 0"); g.e("v_mov_b32 v7, 0")
g.smov(54, WS_FLAGS)
g.e(f"buffer_store_dwordx2 v[6:7], v4, s[{S_WS}:{S_WS+3}], s54 offen sc1")
g.wait(vm=0); g.e("s_barrier")
z2 = g.new("z2")
g.e("s_cmp_eq_u32 s32, 0"); g.e(f"s_cbranch_scc0 {z2}")
g.smov(54, DBG_ZERO*4); g.smov(55, 1); store_word(g, S_DBG, 54, 55, 4)
g.lbl(z2)
g.lbl(zs)
ws_ = g.new("wt")
g.e("s_sub_u32 s30, s40, 129"); g.e("s_cmp_ge_u32 s30, 5"); g.e(f"s_cbranch_scc1 {ws_}")
g.srd(12, PWO, 640*1280)
final.gen_wot(g, "WT", 12, 30)
g.smov(55, DBG_WOT*4); wg_signal_add(g, "WT", S_DBG, 55, 4)
g.lbl(ws_)
g.srd(24, PX, 2048*1280); g.srd(12, PWQKV, 640*3840)
g.e("s_sub_u32 s54, s40, 128"); g.e("s_lshr_b32 s30, s54, 2"); g.e("s_and_b32 s33, s54, 3"); g.e("s_lshl_b32 s33, s33, 4"); g.e("s_add_u32 s34, s33, 16")
aqkv.gen_aqkv(g, "AQ")
g.smov(55, DBG_AQ*4); wg_signal_add(g, "AQ", S_DBG, 55, 4)
tl(g, 4)
g.lbl("f_queue")
ticket(g, "Q", DBG_QUEUE, 40)
g.e("s_cmp_ge_u32 s40, 256"); g.e("s_cbranch_scc1 f_fin")
g.c("==== attention item")
g.smov(55, DBG_AQ*4); wg_wait(g, "AW", S_DBG, 55, 1, 4, lambda: g.smov(54, 64), 4, sleep=4)
g.e("s_lshr_b32 s30, s40, 3"); g.e("s_and_b32 s31, s40, 7")
aattn.gen_aattn(g, "AT")
g.e("s_lshl_b32 s55, s31, 2"); g.e(f"s_add_u32 s55, s55, {hex(WS_FLAGS + F_ATT*4)}")
wg_signal_add(g, "AT", S_WS, 55, 4)
g.e("s_branch f_queue")
g.lbl("f_fin")
tl(g, 5)
g.e("s_sub_u32 s40, s40, 256")
g.e(f"s_cmp_ge_u32 s40, {64*12}"); g.e("s_cbranch_scc1 f_end2")
g.smov(54, 0x15555556); g.e("s_mul_hi_u32 s30, s40, s54")
g.e("s_mul_i32 s54, s30, 12"); g.e("s_sub_u32 s31, s40, s54")
g.e("s_cmp_ge_u32 s31, 4"); g.e("s_cbranch_scc1 f_gout")
g.c("==== P item (s=s30, hg=s31)")
g.e("s_and_b32 s55, s30, 1"); g.e("s_lshl_b32 s55, s55, 5"); g.e("s_lshl_b32 s56, s31, 3"); g.e("s_add_u32 s55, s55, s56"); g.e("s_lshl_b32 s55, s55, 2")
g.e(f"s_add_u32 s55, s55, {hex(WS_FLAGS + F_PROG*4)}")
wg_wait(g, "PW", S_WS, 55, 8, 4, lambda: (g.e("s_lshr_b32 s54, s30, 1"), g.e("s_add_u32 s54, s54, 1")), 4, sleep=8)
def wait_km(g):
    g.e("s_lshl_b32 s55, s31, 5"); g.e(f"s_add_u32 s55, s55, {hex(WS_FLAGS + F_CHAIN*4)}")
    wg_wait(g, "PK", S_WS, 55, 8, 4, lambda: g.e("s_add_u32 s54, s30, 1"), 12, sleep=4)
final.gen_ptok(g, "PT", wait_km=wait_km)
g.e("s_lshl_b32 s55, s30, 2"); g.e(f"s_add_u32 s55, s55, {hex(WS_FLAGS + F_PCNT*4)}")
wg_signal_add(g, "PT", S_WS, 55, 4)
g.e("s_branch f_queue")
g.lbl("f_gout")
g.c("==== G item (s=s30, cg=s31-4)")
g.e("s_sub_u32 s31, s31, 4")
g.srd(24, PX, 2048*1280); g.srd(12, PGW, 1280); g.srd(16, POUT, 2048*1280)
def wait_a(g):
    g.smov(55, DBG_WOT*4); wg_wait(g, "GW", S_DBG, 55, 1, 4, lambda: g.smov(54, 5), 12, sleep=4)
    g.e("s_lshr_b32 s55, s30, 3"); g.e("s_lshl_b32 s55, s55, 2"); g.e(f"s_add_u32 s55, s55, {hex(WS_FLAGS + F_ATT*4)}")
    wg_wait(g, "GA", S_WS, 55, 1, 4, lambda: g.smov(54, 32), 12, sleep=8)
def wait_p(g):
    g.e("s_and_b32 s55, s30, 1"); g.e("s_lshl_b32 s55, s55, 7"); g.e(f"s_add_u32 s55, s55, {hex(WS_FLAGS + (F_PROG+64)*4)}")
    wg_wait(g, "GB", S_WS, 55, 32, 4, lambda: (g.e("s_lshr_b32 s54, s30, 1"), g.e("s_add_u32 s54, s54, 1")), 12, sleep=8)
    g.smov(55, WS_FLAGS + F_CHAIN*4)
    wg_wait(g, "GY", S_WS, 55, 32, 4, lambda: g.e("s_add_u32 s54, s30, 1"), 12, sleep=4)
    l63 = g.new("l63")
    g.e("s_cmp_eq_u32 s30, 63"); g.e(f"s_cbranch_scc0 {l63}")
    g.smov(55, WS_FLAGS + (F_CHAIN+32)*4)
    wg_wait(g, "GZ", S_WS, 55, 32, 4, lambda: g.smov(54, 64), 12, sleep=2)
    g.lbl(l63)
    g.e("s_lshl_b32 s55, s30, 2"); g.e(f"s_add_u32 s55, s55, {hex(WS_FLAGS + F_PCNT*4)}")
    wg_wait(g, "GP", S_WS, 55, 1, 4, lambda: g.smov(54, 4), 12, sleep=2)
final.gen_gout(g, "GO", 24, 12, 16, wait_a=wait_a, wait_p=wait_p)
g.e("s_branch f_queue")
g.lbl("f_end2")
tl(g, 6)
g.lbl("f_end"); g.e("s_endpgm")
hdr = HEADER + "; @launch grid=(256,1,1) block=(256,1,1) lds=163840\n"
out = hdr + '.amdgcn_target "amdgcn-amd-amdhsa--gfx950"\n.text\n' + g.text() + f""".section .rodata,"a"
.p2align 6
.amdhsa_kernel {KN}
  .amdhsa_next_free_vgpr 512
  .amdhsa_next_free_sgpr 102
  .amdhsa_accum_offset 256
  .amdhsa_group_segment_fixed_size 0
  .amdhsa_kernarg_size 112
  .amdhsa_user_sgpr_count 2
  .amdhsa_user_sgpr_kernarg_segment_ptr 1
  .amdhsa_system_sgpr_workgroup_id_x 1
.end_amdhsa_kernel
"""
open(sys.argv[1] if len(sys.argv) > 1 else "fused.s", "w").write(out)
```

```python
from asmlib import *
from layout import *
S_WS = 8
S_WAVE = 32
S_AH, S_AQ = 30, 31
S_KB = 33
S_T0, S_T1, S_T2 = 54, 55, 56
S_C = 58
S_KO, S_VO, S_BUF = 34, 35, 36
V_KA, V_VA, V_OA, V_LR = 4, 5, 6, 7
V_M = 8
V_T = 12
V_Q = 20
V_KV = 36
V_P = 64 + 4
V_S = 96
V_O = 160
CH = 65536

def gen_aattn(g, P):
    g.e(f"v_and_b32 v{V_T}, 31, v1"); g.e(f"v_lshrrev_b32 v{V_T+1}, 5, v1")
    g.e(f"v_lshlrev_b32 v{V_KA}, 6, v{V_T}"); g.e(f"v_lshl_add_u32 v{V_KA}, v{V_T+1}, 4, v{V_KA}")
    g.e(f"v_lshlrev_b32 v{V_VA}, 12, v{V_T}"); g.e(f"v_lshl_add_u32 v{V_VA}, v{V_T+1}, 4, v{V_VA}")
    g.e(f"v_lshlrev_b32 v{V_LR}, 4, v1")
    g.e(f"s_lshl_b32 s{S_T0}, s{S_AH}, 17")
    g.e(f"s_add_u32 s{S_KO}, s{S_T0}, {hex(WS_KA)}"); g.e(f"s_add_u32 s{S_VO}, s{S_T0}, {hex(WS_VT)}")
    g.e(f"s_lshl_b32 s{S_T1}, s{S_AQ}, 8"); g.e(f"s_lshl_b32 s{S_T2}, s{S_WAVE}, 6"); g.e(f"s_add_u32 s{S_T1}, s{S_T1}, s{S_T2}")
    g.e(f"s_lshl_b32 s{S_T2}, s{S_T1}, 6"); g.e(f"s_add_u32 s{S_T2}, s{S_T2}, s{S_T0}"); g.e(f"s_add_u32 s{S_T2}, s{S_T2}, {hex(WS_QA)}")
    for t in range(2):
        for c in range(2):
            g.e(f"buffer_load_dwordx4 {v(V_Q+8*t+4*c,4)}, v{V_KA}, s[{S_WS}:{S_WS+3}], s{S_T2} offen offset:{2048*t+32*c} sc1")
    g.e(f"v_add_u32 v{V_OA}, s{S_T1}, v{V_T}"); g.e(f"v_mul_u32_u24 v{V_OA}, 1280, v{V_OA}")
    g.e(f"s_mul_i32 s{S_T1}, s{S_AH}, 40"); g.e(f"s_add_u32 s{S_T1}, s{S_T1}, {hex(WS_OA)}")
    g.e(f"v_add_u32 v{V_OA}, s{S_T1}, v{V_OA}"); g.e(f"v_lshl_add_u32 v{V_OA}, v{V_T+1}, 3, v{V_OA}")
    g.smov(S_C, 0x3ea52b5c); g.smov(S_C+1, 0x3ea52b5c)
    for t in range(2):
        g.e(f"v_mov_b32 v{V_M+2*t}, 0xf149f2ca"); g.e(f"v_mov_b32 v{V_M+2*t+1}, 0xf149f2ca")
        for r in range(16): g.e(f"v_mov_b32 v{V_O+16*t+r}, 0")
    g.e(f"v_mov_b32 v{V_T+5}, 0x41000000")
    def dma(chunk_sgpr_k, chunk_sgpr_v, buf_sgpr):
        g.e(f"s_lshl_b32 s{S_T0}, s{S_WAVE}, 14"); g.e(f"s_add_u32 s{S_T0}, s{S_T0}, s{buf_sgpr}")
        g.e(f"s_lshl_b32 s{S_T1}, s{S_WAVE}, 13"); g.e(f"s_add_u32 s{S_T1}, s{S_T1}, s{chunk_sgpr_k}")
        g.e(f"s_lshl_b32 s{S_T2}, s{S_WAVE}, 8"); g.e(f"s_add_u32 s{S_T2}, s{S_T2}, s{chunk_sgpr_v}")
        for b in range(4):
            for c in range(2):
                g.e(f"s_add_u32 m0, s{S_T0}, {b*4096 + c*1024}")
                g.e(f"s_add_u32 s57, s{S_T1}, {b*2048 + c*32}")
                g.e(f"buffer_load_dwordx4 v{V_KA}, s[{S_WS}:{S_WS+3}], s57 offen sc1 lds")
            for u in range(2):
                g.e(f"s_add_u32 m0, s{S_T0}, {b*4096 + 2048 + u*1024}")
                g.e(f"s_add_u32 s57, s{S_T2}, {b*64 + u*32}")
                g.e(f"buffer_load_dwordx4 v{V_VA}, s[{S_WS}:{S_WS+3}], s57 offen sc1 lds")
    def rdK(st, voff, blk):
        for c in range(2): g.e(f"ds_read_b128 {v(V_KV+16*st+4*c,4)}, v{voff} offset:{blk*4096 + c*1024}")
    def rdV(st, voff, blk):
        for u in range(2): g.e(f"ds_read_b128 {v(V_KV+16*st+8+4*u,4)}, v{voff} offset:{blk*4096 + 2048 + u*1024}")
    def smfma(buf, st):
        for t in range(2):
            d = v(V_S+32*buf+16*t, 16)
            g.e(f"v_mfma_f32_32x32x16_bf16 {d}, {v(V_KV+16*st,4)}, {v(V_Q+8*t,4)}, 0")
            g.e(f"v_mfma_f32_32x32x16_bf16 {d}, {v(V_KV+16*st+4,4)}, {v(V_Q+8*t+4,4)}, {d}")
    resc = []
    def softmax_pv(buf, t, st, extra):
        S = V_S + 32*buf + 16*t; O = V_O + 16*t; m = V_M + 2*t
        a_, b_ = V_T, V_T+1
        ex = list(extra)
        def X():
            if ex: g.e(ex.pop(0))
        g.e(f"v_max3_f32 v{a_}, v{S}, v{S+1}, v{S+2}"); g.e(f"v_max3_f32 v{b_}, v{S+3}, v{S+4}, v{S+5}")
        g.e(f"v_max3_f32 v{a_}, v{a_}, v{S+6}, v{S+7}"); g.e(f"v_max3_f32 v{b_}, v{b_}, v{S+8}, v{S+9}")
        X()
        g.e(f"v_max3_f32 v{a_}, v{a_}, v{S+10}, v{S+11}"); g.e(f"v_max3_f32 v{b_}, v{b_}, v{S+12}, v{S+13}")
        g.e(f"v_max3_f32 v{a_}, v{a_}, v{S+14}, v{S+15}")
        g.e(f"v_max_f32 v{a_}, v{a_}, v{b_}")
        g.e(f"v_mov_b32 v{b_}, v{a_}")
        g.e("s_nop 1")
        g.e(f"v_permlane32_swap_b32 v{a_}, v{b_}")
        g.e("s_nop 0")
        g.e(f"v_max_f32 v{a_}, v{a_}, v{b_}")
        g.e(f"v_fma_f32 v{b_}, v{a_}, s{S_C}, -v{m}")
        g.e(f"v_cmp_gt_f32 vcc, v{b_}, v{V_T+5}")
        R = g.new(P+"rs"); B = g.new(P+"rb")
        g.e(f"s_cbranch_vccnz {R}")
        g.lbl(B)
        for r in range(8):
            g.e(f"v_pk_fma_f32 {v(S+2*r,2)}, {v(S+2*r,2)}, s[{S_C}:{S_C+1}], {v(m,2)} neg_lo:[0,0,1] neg_hi:[0,0,1]")
            if r == 3: X()
        for r in range(16):
            g.e(f"v_exp_f32 v{S+r}, v{S+r}")
            if r in (4, 10): X()
        g.e("s_nop 0")
        for r in range(8): g.e(f"v_cvt_pk_bf16_f32 v{V_P+8*t+r}, v{S+2*r}, v{S+2*r+1}")
        while ex: X()
        resc.append((R, B, a_, m, O))
    def pv(t, st):
        d = v(V_O + 16*t, 16)
        return [f"v_mfma_f32_32x32x16_bf16 {d}, {v(V_KV+16*st+8,4)}, {v(V_P+8*t,4)}, {d}",
                f"v_mfma_f32_32x32x16_bf16 {d}, {v(V_KV+16*st+12,4)}, {v(V_P+8*t+4,4)}, {d}"]
    def sm(buf, st, t):
        d = v(V_S+32*buf+16*t, 16)
        return [f"v_mfma_f32_32x32x16_bf16 {d}, {v(V_KV+16*st,4)}, {v(V_Q+8*t,4)}, 0",
                f"v_mfma_f32_32x32x16_bf16 {d}, {v(V_KV+16*st+4,4)}, {v(V_Q+8*t+4,4)}, {d}"]
    g.smov(S_BUF, 0)
    dma(S_KO, S_VO, S_BUF)
    g.smov(S_KB, 0)
    CL = P+"_chunk"; NOPF = P+"_nopf"
    g.lbl(CL)
    if getattr(g, 'atst', 0): g.e("s_memtime s[80:81]"); g.wait(lgkm=0)
    g.wait(vm=0); g.e("s_barrier")
    if getattr(g, 'atst', 0): g.e("s_memtime s[82:83]"); g.wait(lgkm=0)
    g.e(f"s_add_u32 s{S_KO}, s{S_KO}, {16*2048}"); g.e(f"s_add_u32 s{S_VO}, s{S_VO}, {16*64}")
    g.e(f"s_xor_b32 s37, s{S_BUF}, {CH}")
    g.e(f"s_cmp_ge_u32 s{S_KB}, 3"); g.e(f"s_cbranch_scc1 {NOPF}")
    dma(S_KO, S_VO, 37)
    g.lbl(NOPF)
    VB0, VB1 = V_T+6, V_T+7
    g.e(f"v_add_u32 v{VB0}, s{S_BUF}, v{V_LR}"); g.e(f"v_add_u32 v{VB1}, 32768, v{VB0}")
    def vb(blk): return (VB0, blk) if blk < 8 else (VB1, blk-8)
    o, b = vb(0); rdK(0, o, b); rdV(0, o, b)
    o, b = vb(1); rdK(1, o, b)
    g.wait(lgkm=4)
    smfma(0, 0)
    pend = []
    for blk in range(16):
        par = blk % 2
        g.wait(lgkm=0)
        if getattr(g, 'atst', 0) and blk in (0, 4, 12, 15):
            g.e(f"s_memtime s[{72+2*(0,4,12,15).index(blk)}:{73+2*(0,4,12,15).index(blk)}]"); g.wait(lgkm=0)
        s_next = (sm(1-par, 1-par, 0) + sm(1-par, 1-par, 1)) if blk + 1 < 16 else []
        softmax_pv(par, 0, par, pend + s_next[:2])
        if blk + 2 < 16:
            o, b = vb(blk+2); rdK2 = True
        if blk + 1 < 16:
            o, b = vb(blk+1); rdV(1-par, o, b)
        g.e("s_nop 0")
        softmax_pv(par, 1, par, pv(0, par) + s_next[2:])
        if blk + 2 < 16:
            o, b = vb(blk+2); rdK(par, o, b)
        pend = pv(1, par)
    g.e("s_nop 1")
    for x in pend: g.e(x)
    g.e(f"s_mov_b32 s{S_BUF}, s37")
    g.e(f"s_add_u32 s{S_KB}, s{S_KB}, 1"); g.e(f"s_cmp_lt_u32 s{S_KB}, 4"); g.e(f"s_cbranch_scc1 {CL}")
    g.c("epilogue")
    g.nop(12)
    for t in range(2):
        O = V_O + 16*t
        g.e(f"v_mov_b32 v{V_T}, v{O+8}"); g.e(f"v_mov_b32 v{V_T+1}, v{O+8}")
        g.e("s_nop 1")
        g.e(f"v_permlane32_swap_b32 v{V_T}, v{V_T+1}")
        g.e("s_nop 0")
        g.e(f"v_rcp_f32 v{V_T+1}, v{V_T+1}")
        g.e("s_nop 0")
        for r in range(12): g.e(f"v_mul_f32 v{O+r}, v{O+r}, v{V_T+1}")
        for b in range(3):
            g.e(f"v_cvt_pk_bf16_f32 v{V_P+2*b}, v{O+4*b}, v{O+4*b+1}"); g.e(f"v_cvt_pk_bf16_f32 v{V_P+2*b+1}, v{O+4*b+2}, v{O+4*b+3}")
        g.smov(S_T0, t*32*1280)
        g.e(f"buffer_store_dwordx2 {v(V_P,2)}, v{V_OA}, s[{S_WS}:{S_WS+3}], s{S_T0} offen sc1")
        g.e(f"buffer_store_dwordx2 {v(V_P+2,2)}, v{V_OA}, s[{S_WS}:{S_WS+3}], s{S_T0} offen offset:16 sc1")
        g.e("s_mov_b32 exec_hi, 0")
        g.e(f"buffer_store_dwordx2 {v(V_P+4,2)}, v{V_OA}, s[{S_WS}:{S_WS+3}], s{S_T0} offen offset:32 sc1")
        g.e("s_mov_b32 exec_hi, -1")
    g.wait(vm=0)
    END = P+"_end"
    g.e(f"s_branch {END}")
    for (R, B, a_, m, O) in resc:
        g.lbl(R)
        g.e(f"v_mul_f32 v{V_T+2}, s{S_C}, v{a_}")
        g.e(f"v_max_f32 v{V_T+2}, v{V_T+2}, v{m}")
        g.e(f"v_sub_f32 v{V_T+3}, v{m}, v{V_T+2}")
        g.e(f"v_exp_f32 v{V_T+3}, v{V_T+3}")
        g.e(f"v_mov_b32 v{m}, v{V_T+2}"); g.e(f"v_mov_b32 v{m+1}, v{V_T+2}")
        g.nop(8)
        for r in range(16): g.e(f"v_mul_f32 v{O+r}, v{O+r}, v{V_T+3}")
        g.e(f"s_branch {B}")
    g.lbl(END)
```

```python
from asmlib import *
from layout import *
S_WS = 8
S_WAVE = 32
S_T0, S_T1, S_T2 = 54, 55, 56

def gen_wot(g, P, S_WO, S_SG):
    vD, vB0, vB1, vT0, vT1 = 10, 11, 12, 13, 14
    g.e(f"s_lshr_b32 s{S_T0}, s{S_WAVE}, 1"); g.e(f"s_lshl_b32 s{S_T0}, s{S_T0}, 3")
    g.e(f"v_lshlrev_b32 v{vT0}, 1, v3"); g.e(f"v_add_u32 v{vT0}, s{S_T0}, v{vT0}")
    g.e(f"v_xor_b32 v{vT0}, v{vT0}, v2"); g.e(f"v_lshlrev_b32 v{vT0}, 4, v{vT0}")
    g.e(f"s_lshl_b32 s{S_T0}, s{S_WAVE}, 2"); g.e(f"v_add_u32 v{vT1}, s{S_T0}, v3")
    g.e(f"v_mul_u32_u24 v{vD}, 1280, v{vT1}"); g.e(f"v_add_u32 v{vD}, v{vD}, v{vT0}")
    for dst, add in ((vB0, 0), (vB1, 1)):
        g.e(f"s_lshl_b32 s{S_T0}, s{S_WAVE}, 2"); g.e(f"s_add_u32 s{S_T0}, s{S_T0}, {2*add}")
        g.e(f"v_bfe_u32 v{vT0}, v1, 1, 1"); g.e(f"v_add_u32 v{vT0}, s{S_T0}, v{vT0}")
        g.e(f"v_lshrrev_b32 v{vT1}, 2, v2"); g.e(f"v_lshlrev_b32 v{vT1}, 1, v{vT1}")
        g.e(f"v_and_b32 v{dst}, 1, v3"); g.e(f"v_lshl_add_u32 v{vT1}, v{dst}, 3, v{vT1}")
        g.e(f"v_xor_b32 v{vT0}, v{vT0}, v{vT1}"); g.e(f"v_lshlrev_b32 v{vT0}, 4, v{vT0}")
        g.e(f"v_and_b32 v{vT1}, 1, v1"); g.e(f"v_lshl_add_u32 v{vT0}, v{vT1}, 3, v{vT0}")
        g.e(f"v_lshrrev_b32 v{vT1}, 2, v2"); g.e(f"v_lshl_add_u32 v{vT1}, v3, 3, v{vT1}")
        g.e(f"v_lshl_add_u32 v{dst}, v{vT1}, 8, v{vT0}")
    for c in range(4):
        for q in range(10):
            g.e(f"s_lshl_b32 s{S_T1}, s{S_WAVE}, 10"); g.e(f"s_add_u32 m0, s{S_T1}, {hex(c*40960 + q*4096)}")
            g.e(f"s_lshl_b32 s{S_T2}, s{S_SG}, 8"); g.e(f"s_add_u32 s{S_T2}, s{S_T2}, {hex((160*c+16*q)*1280)}")
            g.e(f"buffer_load_dwordx4 v{vD}, s[{S_WO}:{S_WO+3}], s{S_T2} offen lds")
    g.wait(vm=0); g.e("s_barrier")
    g.e(f"v_lshlrev_b32 v15, 4, v1")
    g.e(f"s_lshl_b32 s{S_T0}, s{S_SG}, 3"); g.e(f"s_lshl_b32 s{S_T1}, s{S_WAVE}, 1"); g.e(f"s_add_u32 s{S_T0}, s{S_T0}, s{S_T1}")
    g.e(f"s_mul_i32 s{S_T0}, s{S_T0}, 20480"); g.e(f"s_add_u32 s{S_T0}, s{S_T0}, {hex(WS_WOT)}")
    for t, vb in enumerate((vB0, vB1)):
        for c in range(4):
            g.e(f"v_add_u32 v{vT0}, {hex(c*40960)}, v{vb}")
            for kl in range(5):
                for half in range(2):
                    g.e(f"ds_read_b64_tr_b16 {v(32+4*kl+2*half,2)}, v{vT0} offset:{kl*8192+half*1024}")
            g.wait(lgkm=0)
            for kl in range(5):
                g.e(f"s_add_u32 s{S_T1}, s{S_T0}, {t*20480 + (5*c+kl)*1024}")
                g.e(f"buffer_store_dwordx4 {v(32+4*kl,4)}, v15, s[{S_WS}:{S_WS+3}], s{S_T1} offen sc1")
            g.wait(vm=0)
    g.e("s_barrier")

S_PS, S_PH = 30, 31
def gen_ptok_setup(g):
    g.e("v_lshlrev_b32 v10, 2, v3")
    for r in range(4):
        g.e(f"v_add_u32 v11, {r}, v10")
        g.e(f"v_cmp_le_u32 s[{60+2*r}:{61+2*r}], v11, v2")
    g.e("v_cmp_gt_u32 s[68:69], 2, v3")

def gen_ptok(g, P, wait_km=None):
    V_L16, V_NEG = 6, 7
    V_QK = 32
    V_KM = 160
    V_S = 192
    V_T = 240
    gen_ptok_setup(g)
    g.e(f"v_lshlrev_b32 v{V_L16}, 4, v1")
    g.e(f"v_mov_b32 v{V_NEG}, 0xff61b1e6")
    g.smov(57, 0x3e0293ee)
    g.e("v_lshlrev_b32 v8, 9, v2"); g.e("v_lshl_add_u32 v8, v3, 3, v8")
    g.e(f"s_lshl_b32 s58, s{S_PH}, 3"); g.e(f"s_lshl_b32 s{S_T0}, s{S_WAVE}, 1"); g.e(f"s_add_u32 s58, s58, s{S_T0}")
    g.e(f"s_lshl_b32 s44, s{S_PS}, 5"); g.e(f"s_add_u32 s44, s44, s58")
    for hh in range(2):
        Q = V_QK + 64*hh; K = Q + 32
        g.e(f"s_add_u32 s{S_T0}, s44, {hh}"); g.e(f"s_lshl_b32 s{S_T1}, s{S_T0}, 13")
        for base, reg in ((WS_QF, Q), (WS_KF, K)):
            g.e(f"s_add_u32 s{S_T2}, s{S_T1}, {hex(base)}")
            for wp in range(4):
                g.e(f"s_add_u32 s59, s{S_T2}, {wp*2048}")
                for tq in range(2):
                    g.e(f"buffer_load_dwordx4 {v(reg+4*(wp*2+tq),4)}, v{V_L16}, s[{S_WS}:{S_WS+3}], s59 offen offset:{1024*tq} sc1")
    g.wait(vm=0)
    for hh in range(2):
        Q = V_QK + 64*hh; K = Q + 32; S = V_S + 24*hh
        for wp in range(4):
            for tq in range(2):
                for tt in range(tq+1):
                    d = v(S+12*tq+4+4*tt, 4)
                    g.e(f"v_mfma_f32_16x16x32_bf16 {d}, {v(K+4*(wp*2+tt),4)}, {v(Q+4*(wp*2+tq),4)}, {'0' if wp==0 else d}")
    if wait_km: wait_km(g)
    for hh in range(2):
        g.e(f"s_add_u32 s{S_T0}, s44, {hh}"); g.e(f"s_lshl_b32 s{S_T2}, s{S_T0}, 12"); g.e(f"s_add_u32 s{S_T2}, s{S_T2}, {hex(WS_KM)}")
        for wp in range(4):
            g.e(f"buffer_load_dwordx4 {v(V_KM+16*hh+4*wp,4)}, v{V_L16}, s[{S_WS}:{S_WS+3}], s{S_T2} offen offset:{1024*wp} sc1")
    for hh in range(2):
        Q = V_QK + 64*hh; S = V_S + 24*hh
        g.wait(vm=4*(1-hh))
        for wp in range(4):
            for tq in range(2):
                d = v(S+12*tq, 4)
                g.e(f"v_mfma_f32_16x16x32_bf16 {d}, {v(V_KM+16*hh+4*wp,4)}, {v(Q+4*(wp*2+tq),4)}, {'0' if wp==0 else d}")
    g.nop(8)
    for hh in range(2):
        for tq in range(2):
            S = V_S + 24*hh + 12*tq
            M, X0, X1 = S, S+4, S+8
            diag = X0 if tq == 0 else X1
            for r in range(4):
                g.e(f"v_cndmask_b32 v{M+r}, v{V_NEG}, v{M+r}, s[68:69]")
                g.e(f"v_cndmask_b32 v{diag+r}, v{V_NEG}, v{diag+r}, s[{60+2*r}:{61+2*r}]")
            vals = [M+r for r in range(4)] + [X0+r for r in range(4)] + ([X1+r for r in range(4)] if tq == 1 else [])
            m, m2 = V_T, V_T+1
            g.e(f"v_max3_f32 v{m}, v{vals[0]}, v{vals[1]}, v{vals[2]}")
            i = 3
            while i < len(vals):
                if i+1 < len(vals): g.e(f"v_max3_f32 v{m}, v{m}, v{vals[i]}, v{vals[i+1]}"); i += 2
                else: g.e(f"v_max_f32 v{m}, v{m}, v{vals[i]}"); i += 1
            def xred(reg, tmp, op):
                g.e(f"v_mov_b32 v{tmp}, v{reg}"); g.e("s_nop 1")
                g.e(f"v_permlane32_swap_b32 v{reg}, v{tmp}"); g.e("s_nop 0")
                g.e(f"{op} v{reg}, v{reg}, v{tmp}")
                g.e(f"v_mov_b32 v{tmp}, v{reg}"); g.e("s_nop 1")
                g.e(f"v_permlane16_swap_b32 v{reg}, v{tmp}"); g.e("s_nop 0")
                g.e(f"{op} v{reg}, v{reg}, v{tmp}")
            xred(m, m2, "v_max_f32")
            g.e(f"v_mul_f32 v{m}, s57, v{m}")
            for x in vals: g.e(f"v_fma_f32 v{x}, v{x}, s57, -v{m}")
            for x in vals: g.e(f"v_exp_f32 v{x}, v{x}")
            g.e("s_nop 0")
            l = V_T+2
            g.e(f"v_add_f32 v{l}, v{vals[0]}, v{vals[1]}")
            for x in vals[2:]: g.e(f"v_add_f32 v{l}, v{l}, v{x}")
            xred(l, m2, "v_add_f32")
            g.e(f"v_rcp_f32 v{l}, v{l}"); g.e("s_nop 0")
            for x in vals: g.e(f"v_mul_f32 v{x}, v{x}, v{l}")
            o = V_T + 4 + 6*((hh*2+tq) % 2)
            o = (V_T + 4) if (hh*2+tq) % 2 == 0 else (V_T + 10 - 0)
            o = o + (o % 2)
            o4 = 244 if (hh*2+tq) % 2 == 0 else 248
            o2 = 252 if (hh*2+tq) % 2 == 0 else 254
            g.e(f"v_cvt_pk_bf16_f32 v{o4}, v{X0}, v{X0+1}"); g.e(f"v_cvt_pk_bf16_f32 v{o4+1}, v{X0+2}, v{X0+3}")
            if tq == 1:
                g.e(f"v_cvt_pk_bf16_f32 v{o4+2}, v{X1}, v{X1+1}"); g.e(f"v_cvt_pk_bf16_f32 v{o4+3}, v{X1+2}, v{X1+3}")
            else:
                g.e(f"v_mov_b32 v{o4+2}, 0"); g.e(f"v_mov_b32 v{o4+3}, 0")
            g.e(f"v_cvt_pk_bf16_f32 v{o2}, v{M}, v{M+1}"); g.e(f"v_cvt_pk_bf16_f32 v{o2+1}, v{M+2}, v{M+3}")
            g.e(f"s_add_u32 s{S_T0}, s44, {hh}"); g.e(f"s_lshl_b32 s{S_T2}, s{S_T0}, 11"); g.e(f"s_add_u32 s{S_T2}, s{S_T2}, {hex(WS_PTX + tq*1024)}")
            g.e(f"buffer_store_dwordx4 {v(o4,4)}, v{V_L16}, s[{S_WS}:{S_WS+3}], s{S_T2} offen sc1")
            g.e(f"s_lshl_b32 s{S_T2}, s{S_PS}, 14"); g.e(f"s_add_u32 s59, s58, {hh}"); g.e(f"s_lshl_b32 s59, s59, 4"); g.e(f"s_add_u32 s{S_T2}, s{S_T2}, s59")
            g.e(f"s_add_u32 s{S_T2}, s{S_T2}, {hex(WS_PTM + tq*8192)}")
            g.e("s_mov_b64 exec, s[68:69]")
            g.e(f"buffer_store_dwordx2 {v(o2,2)}, v8, s[{S_WS}:{S_WS+3}], s{S_T2} offen sc1")
            g.e("s_mov_b64 exec, -1")
            g.e("s_nop 1")
    g.wait(vm=0)

S_GS, S_GC = 30, 31
def gen_gout(g, P, S_X, S_GW, S_OUT, wait_a=None, wait_p=None, wait_bf=None):
    V_L16, V_XO, V_PM, V_YO, V_GWO, V_OO = 6, 7, 8, 9, 10, 11
    ACC_B, ACC_A, ACC_G = 32, 72, 112
    V_B = 128
    g.e(f"v_lshlrev_b32 v{V_L16}, 4, v1")
    g.e(f"v_mul_u32_u24 v{V_XO}, 1280, v2"); g.e(f"v_lshl_add_u32 v{V_XO}, v3, 4, v{V_XO}")
    g.e(f"v_lshlrev_b32 v{V_GWO}, 4, v3")
    g.e(f"v_lshlrev_b32 v{V_PM}, 9, v2"); g.e(f"v_lshl_add_u32 v{V_PM}, v3, 4, v{V_PM}")
    g.e(f"v_mul_u32_u24 v{V_YO}, 10240, v3"); g.e(f"v_lshl_add_u32 v{V_YO}, v2, 4, v{V_YO}")
    if wait_a: wait_a(g)
    g.c("A part: kk = 5w..5w+4")
    g.e(f"s_mul_i32 s58, s{S_GS}, {32*1280}"); g.e(f"s_mul_i32 s{S_T0}, s{S_WAVE}, 320"); g.e(f"s_add_u32 s58, s58, s{S_T0}")
    g.e(f"s_mul_i32 s59, s{S_GC}, {5*20480}"); g.e(f"s_mul_i32 s{S_T0}, s{S_WAVE}, 5120"); g.e(f"s_add_u32 s59, s59, s{S_T0}"); g.e(f"s_add_u32 s59, s59, {hex(WS_WOT)}")
    g.e(f"s_mul_i32 s60, s{S_WAVE}, 320")
    for kl in range(5):
        B = V_B + 40*(kl % 2)
        for tq in range(2):
            g.e(f"s_add_u32 s{S_T0}, s58, {tq*16*1280 + kl*64}")
            g.e(f"s_add_u32 s{S_T1}, s{S_T0}, {hex(WS_OA)}")
            g.e(f"buffer_load_dwordx4 {v(B+4*tq,4)}, v{V_XO}, s[{S_WS}:{S_WS+3}], s{S_T1} offen sc1")
            g.e(f"buffer_load_dwordx4 {v(B+8+4*tq,4)}, v{V_XO}, s[{S_X}:{S_X+3}], s{S_T0} offen")
        g.e(f"buffer_load_dwordx4 {v(B+16,4)}, v{V_GWO}, s[{S_GW}:{S_GW+3}], s60 offen offset:{kl*64}")
        for ctl in range(5):
            g.e(f"s_add_u32 s{S_T0}, s59, {ctl*20480 + kl*1024}")
            g.e(f"buffer_load_dwordx4 {v(B+20+4*ctl,4)}, v{V_L16}, s[{S_WS}:{S_WS+3}], s{S_T0} offen sc1")
        g.wait(vm=0)
        for tq in range(2):
            d = v(ACC_G+4*tq,4)
            g.e(f"v_mfma_f32_16x16x32_bf16 {d}, {v(B+16,4)}, {v(B+8+4*tq,4)}, {'0' if kl==0 else d}")
            for ctl in range(5):
                d = v(ACC_A+4*(ctl*2+tq),4)
                g.e(f"v_mfma_f32_16x16x32_bf16 {d}, {v(B+20+4*ctl,4)}, {v(B+4*tq,4)}, {'0' if kl==0 else d}")
    if wait_bf: wait_bf(g)
    g.c("BF prefetch -> a[0:159]")
    g.e(f"s_lshl_b32 s58, s{S_GS}, 5"); g.e(f"s_lshl_b32 s{S_T0}, s{S_WAVE}, 3"); g.e(f"s_add_u32 s58, s58, s{S_T0}")
    g.e(f"s_mul_i32 s59, s58, 40960"); g.e(f"s_mul_i32 s{S_T0}, s{S_GC}, 5120"); g.e(f"s_add_u32 s59, s59, s{S_T0}"); g.e(f"s_add_u32 s59, s59, {hex(WS_BF)}")
    for hh in range(8):
        for ctl in range(5):
            g.e(f"s_add_u32 s{S_T0}, s59, {hh*40960 + ctl*1024}")
            g.e(f"buffer_load_dwordx4 {a(4*(hh*5+ctl),4)}, v{V_L16}, s[{S_WS}:{S_WS+3}], s{S_T0} offen sc1")
    if wait_p: wait_p(g)
    g.c("B part: heads 8w..8w+7")
    g.e(f"s_lshl_b32 s58, s{S_GS}, 14"); g.e(f"s_lshl_b32 s{S_T0}, s{S_WAVE}, 7"); g.e(f"s_add_u32 s58, s58, s{S_T0}"); g.e(f"s_add_u32 s58, s58, {hex(WS_PTM)}")
    g.e(f"s_mul_i32 s59, s{S_GS}, {32*10240}"); g.e(f"s_mul_i32 s{S_T0}, s{S_WAVE}, {8*10240}"); g.e(f"s_add_u32 s59, s59, s{S_T0}")
    g.e(f"s_mul_i32 s{S_T0}, s{S_GC}, {5*256}"); g.e(f"s_add_u32 s59, s59, s{S_T0}"); g.e(f"s_add_u32 s59, s59, {hex(WS_YT)}")
    for u in range(2):
        B = V_B + 28*u
        for tq in range(2):
            g.e(f"s_add_u32 s{S_T0}, s58, {tq*8192 + u*64}")
            g.e(f"buffer_load_dwordx4 {v(B+4*tq,4)}, v{V_PM}, s[{S_WS}:{S_WS+3}], s{S_T0} offen sc1")
        g.e(f"s_add_u32 s{S_T0}, s59, {u*4*10240}")
        for ctl in range(5):
            g.e(f"buffer_load_dwordx4 {v(B+8+4*ctl,4)}, v{V_YO}, s[{S_WS}:{S_WS+3}], s{S_T0} offen offset:{ctl*256} sc1")
    g.e(f"s_lshl_b32 s58, s{S_GS}, 5"); g.e(f"s_lshl_b32 s{S_T0}, s{S_WAVE}, 3"); g.e(f"s_add_u32 s58, s58, s{S_T0}")
    g.e(f"s_lshl_b32 s58, s58, 11"); g.e(f"s_add_u32 s58, s58, {hex(WS_PTX)}")
    PX = V_B + 56
    for hh in range(8):
        g.e(f"s_add_u32 s{S_T0}, s58, {hh*2048}")
        for tq in range(2):
            g.e(f"buffer_load_dwordx4 {v(PX+4*(hh*2+tq),4)}, v{V_L16}, s[{S_WS}:{S_WS+3}], s{S_T0} offen offset:{1024*tq} sc1")
    g.wait(vm=16)
    for u in range(2):
        B = V_B + 28*u
        for ctl in range(5):
            for tq in range(2):
                d = v(ACC_B+4*(ctl*2+tq),4)
                g.e(f"v_mfma_f32_16x16x32_bf16 {d}, {v(B+8+4*ctl,4)}, {v(B+4*tq,4)}, {'0' if u==0 else d}")
    for hh in range(8):
        g.wait(vm=2*(7-hh))
        for ctl in range(5):
            for tq in range(2):
                d = v(ACC_B+4*(ctl*2+tq),4)
                g.e(f"v_mfma_f32_16x16x32_bf16 {d}, {a(4*(hh*5+ctl),4)}, {v(PX+4*(hh*2+tq),4)}, {d}")
    g.nop(8)
    g.c("cross-wave reduce: LDS [w][tile 22][lane*16]; tiles 0..9 b, 10..19 a, 20..21 gate")
    g.e(f"s_mul_i32 s{S_T0}, s{S_WAVE}, {22*1024}"); g.e(f"v_add_u32 v12, s{S_T0}, v{V_L16}")
    for t in range(10):
        g.e(f"ds_write_b128 v12, {v(ACC_B+4*t,4)} offset:{t*1024}")
        g.e(f"ds_write_b128 v12, {v(ACC_A+4*t,4)} offset:{(10+t)*1024}")
    for t in range(2): g.e(f"ds_write_b128 v12, {v(ACC_G+4*t,4)} offset:{(20+t)*1024}")
    g.wait(lgkm=0); g.e("s_barrier")
    g.e(f"v_mul_u32_u24 v{V_OO}, 1280, v2"); g.e(f"v_lshl_add_u32 v{V_OO}, v3, 3, v{V_OO}")
    for rnd in range(3):
        sk = g.new(P+"sk")
        g.e(f"s_add_u32 s58, s{S_WAVE}, {4*rnd}")
        if rnd == 2:
            g.e("s_cmp_ge_u32 s58, 10"); g.e(f"s_cbranch_scc1 {sk}")
        g.e("s_lshl_b32 s59, s58, 10"); g.e(f"v_add_u32 v12, s59, v{V_L16}")
        g.e("s_and_b32 s60, s58, 1"); g.e("s_lshl_b32 s61, s60, 10"); g.e(f"v_add_u32 v13, s61, v{V_L16}")
        R = V_B
        for wp in range(4):
            g.e(f"v_add_u32 v14, {wp*22*1024}, v12")
            g.e(f"ds_read_b128 {v(R+4*wp,4)}, v14")
            g.e(f"ds_read_b128 {v(R+16+4*wp,4)}, v14 offset:{10*1024}")
            g.e(f"v_add_u32 v15, {wp*22*1024 + 20*1024}, v13")
            g.e(f"ds_read_b32 v{R+32+wp}, v15")
        g.wait(lgkm=0)
        for base in (R, R+16):
            for r in range(4):
                g.e(f"v_add_f32 v{base+r}, v{base+r}, v{base+4+r}"); g.e(f"v_add_f32 v{base+8+r}, v{base+8+r}, v{base+12+r}")
            for r in range(4): g.e(f"v_add_f32 v{base+r}, v{base+r}, v{base+8+r}")
        G_ = R+32
        g.e(f"v_add_f32 v{G_}, v{G_}, v{G_+1}"); g.e(f"v_add_f32 v{G_+2}, v{G_+2}, v{G_+3}"); g.e(f"v_add_f32 v{G_}, v{G_}, v{G_+2}")
        g.e(f"v_mul_f32 v{G_}, 0xbfb8aa3b, v{G_}")
        g.e(f"v_exp_f32 v{G_}, v{G_}"); g.e("s_nop 0")
        g.e(f"v_add_f32 v{G_}, 1.0, v{G_}")
        g.e(f"v_rcp_f32 v{G_}, v{G_}"); g.e("s_nop 0")
        for r in range(4):
            g.e(f"v_sub_f32 v{R+16+r}, v{R+16+r}, v{R+r}")
            g.e(f"v_fma_f32 v{R+r}, v{R+16+r}, v{G_}, v{R+r}")
        g.e(f"v_cvt_pk_bf16_f32 v{R+4}, v{R}, v{R+1}"); g.e(f"v_cvt_pk_bf16_f32 v{R+5}, v{R+2}, v{R+3}")
        g.e(f"s_lshl_b32 s61, s{S_GS}, 1"); g.e("s_add_u32 s61, s61, s60"); g.e(f"s_mul_i32 s61, s61, {16*1280}")
        g.e(f"s_mul_i32 s59, s{S_GC}, 5"); g.e("s_lshr_b32 s60, s58, 1"); g.e("s_add_u32 s59, s59, s60"); g.e("s_lshl_b32 s59, s59, 5")
        g.e("s_add_u32 s61, s61, s59")
        g.e(f"buffer_store_dwordx2 {v(R+4,2)}, v{V_OO}, s[{S_OUT}:{S_OUT+3}], s61 offen")
        g.lbl(sk)
    g.wait(vm=0)
    g.e("s_barrier")
```

```python
import sys, os
from asmlib import *
from wload import *
from layout import *
from sync import *
import producer, aqkv, final
import aattn2 as aattn
import importlib
chain = importlib.import_module(os.environ.get('CHAIN','chain13'))
HK = eval(os.environ.get('HK', '{}'))
fast = True
TL = HK.pop('tl', 0)
FS = HK.pop('forcespare', 0)
g = G()
def tl(g, idx, wave0_only=True):
    if not TL: return
    sk = g.new("tl")
    g.e("s_cmp_eq_u32 s32, 0"); g.e(f"s_cbranch_scc0 {sk}")
    g.e("s_memrealtime s[100:101]"); g.wait(lgkm=0)
    g.e("v_mov_b32 v250, s100") if False else None
    g.e("s_lshl_b32 s101, s2, 6"); g.e(f"s_add_u32 s101, s101, {hex(WS_STAMP + 0x40000 + idx*4)}")
    g.e("v_mov_b32 v190, s100"); g.e("v_mov_b32 v191, 0")
    g.e("s_mov_b64 exec, 1")
    g.e(f"buffer_store_dword v190, v191, s[{S_WS}:{S_WS+3}], s101 offen")
    g.e("s_mov_b64 exec, -1")
    g.lbl(sk)
KN = KNAME + "_kernel"
kernel_head(g, KN)
PX, PWQKV, PWO, PMEM, PWQ, PWK, PWV, PWOB, PGW, POUT, PDBG, PWS = range(76, 100, 2)
g.e("s_cmp_ge_u32 s2, 256"); g.e("s_cbranch_scc1 f_end")
g.e(f"s_load_dwordx4 s[{PX}:{PX+3}], s[0:1], 0")
g.e(f"s_load_dwordx2 s[{PWO}:{PWO+1}], s[0:1], 16")
g.e(f"s_load_dwordx2 s[{PMEM}:{PMEM+1}], s[0:1], 32")
g.e(f"s_load_dwordx4 s[{PWQ}:{PWQ+3}], s[0:1], 40")
g.e(f"s_load_dwordx4 s[{PWV}:{PWV+3}], s[0:1], 56")
g.e(f"s_load_dwordx4 s[{PGW}:{PGW+3}], s[0:1], 80")
g.e(f"s_load_dwordx4 s[{PDBG}:{PDBG+3}], s[0:1], 96")
g.e("v_and_b32 v1, 63, v0"); g.e("v_and_b32 v2, 15, v0"); g.e("v_bfe_u32 v3, v0, 4, 2")
g.e("v_lshrrev_b32 v4, 6, v0"); g.e("s_nop 0"); g.e("v_readfirstlane_b32 s32, v4")
g.e("s_getreg_b32 s28, hwreg(HW_REG_XCC_ID)"); g.e("s_and_b32 s28, s28, 7")
g.wait(lgkm=0)
g.srd(S_WS, PWS, 268435456); g.srd(S_DBG, PDBG, 256)
if FS:
    g.e("s_cmp_lt_u32 s2, 20"); g.e("s_cselect_b32 s28, 5, s28")
tl(g, 0)
ticket(g, "F", lambda: g.e("s_lshl_b32 s54, s28, 2"), 29)
g.e("s_cmp_ge_u32 s28, 2"); g.e("s_cbranch_scc1 f_work")
g.e("s_cmp_ge_u32 s29, 32"); g.e("s_cbranch_scc1 f_work")
g.lbl("f_chain")
g.c("==== chain role")
g.srd(chain.S_MEM0, PMEM, 10240)
g.e(f"s_lshr_b32 s{chain.S_HL}, s29, 1")
g.e(f"s_lshl_b32 s{S_H}, s28, 4"); g.e(f"s_add_u32 s{S_H}, s{S_H}, s{chain.S_HL}")
S_RDY = 74
S_CPO = 75
def chain_hooks(typ):
    isA = typ == 'A'
    def ensure(g, need_sgpr_setup):
        ok = g.new("rdy"); lp = g.new("rdl")
        g.e(f"s_cmp_lt_u32 s{chain.S_STEP}, s{S_RDY}"); g.e(f"s_cbranch_scc1 {ok}")
        def tail(): pass
        g.lbl(lp)
        T = chain.V_T + 20
        g.e(f"s_and_b32 s54, s{chain.S_STEP}, 1")
        g.e(f"buffer_load_dword v{T}, v30, s[{S_WS}:{S_WS+3}], 0 offen sc1")
        g.wait(vm=0)
        g.e(f"v_lshl_add_u32 v{T}, v{T}, 1, v31")
        for rot in (1, 2, 4, 8):
            g.e("s_nop 1"); g.e(f"v_min_u32_dpp v{T}, v{T}, v{T} row_ror:{rot} row_mask:0xf bank_mask:0xf")
        g.e("s_nop 1")
        g.e(f"v_readlane_b32 s54, v{T}, 0"); g.e(f"v_readlane_b32 s55, v{T}, 16"); g.e(f"v_readlane_b32 s56, v{T}, 32"); g.e(f"v_readlane_b32 s{S_RDY}, v{T}, 48")
        g.e("s_nop 3")
        g.e("s_min_u32 s54, s54, s55"); g.e(f"s_min_u32 s56, s56, s{S_RDY}"); g.e(f"s_min_u32 s{S_RDY}, s54, s56")
        g.e(f"s_cmp_lt_u32 s{chain.S_STEP}, s{S_RDY}"); g.e(f"s_cbranch_scc1 {ok}")
        g.e("s_sleep 1")
        g.e(f"s_sub_u32 s{chain.S_SPIN}, s{chain.S_SPIN}, 1"); g.e(f"s_cbranch_scc0 {lp}")
        g.e(f"s_mov_b32 s{chain.S_SPIN}, 0"); g.smov(S_RDY, 64)
        g.lbl(ok)
    def pre_loop(g):
        T = chain.V_T
        g.e(f"s_lshl_b32 s54, s28, 4")
        g.e("v_and_b32 v31, 1, v3")
        g.e("v_add_u32 v30, s54, v2")
        g.e(f"v_mov_b32 v{T}, s{S_H}")
        g.e("v_cmp_gt_u32 vcc, 2, v3"); g.e("s_nop 1")
        g.e(f"v_cndmask_b32 v30, v{T}, v30, vcc")
        g.e(f"v_mov_b32 v{T}, 0"); g.e(f"v_mov_b32 v{T+1}, 64"); g.e(f"v_cndmask_b32 v{T}, v{T}, v{T+1}, vcc")
        g.e(f"v_add_u32 v30, v30, v{T}")
        g.e("v_lshl_add_u32 v30, v31, 5, v30")
        g.e(f"v_lshlrev_b32 v30, 2, v30"); g.e(f"v_add_u32 v30, {hex(WS_FLAGS + F_PROG*4)}, v30")
        g.smov(S_RDY, 0)
        g.e(f"s_lshl_b32 s{S_CPO}, s{S_H}, 2"); g.e(f"s_add_u32 s{S_CPO}, s{S_CPO}, {hex(WS_FLAGS + F_CHAIN*4)}")
        g.smov(55, DBG_ZERO*4)
        wg_wait(g, "CZ", S_DBG, 55, 1, 4, lambda: g.smov(54, 1), chain.V_T, sleep=1)
        g.smov(chain.S_STEP, 0)
        tl(g, 1)
        ensure(g, None)
        tl(g, 2)
    def pre_gather(g):
        if isA:
            sk = g.new("cp")
            g.e("s_cmp_eq_u32 s32, 2"); g.e(f"s_cbranch_scc0 {sk}")
            g.e(f"s_sub_u32 s54, s{chain.S_STEP}, 1")
            store_word(g, S_WS, S_CPO, 54, chain.V_T + 21)
            g.lbl(sk)
        ensure(g, None)
    def end(g):
        tl(g, 3)
        g.e("s_barrier")
        sk = g.new("ce")
        g.e("s_cmp_eq_u32 s32, 0"); g.e(f"s_cbranch_scc0 {sk}")
        if not isA: g.e(f"s_add_u32 s{S_CPO}, s{S_CPO}, 128")
        g.smov(54, 64); store_word(g, S_WS, S_CPO, 54, chain.V_T + 21); g.wait(vm=0)
        g.lbl(sk)
    def decide(g):
        T = chain.V_T
        lp = g.new("dc"); dn = g.new("dd")
        g.e(f"v_lshlrev_b32 v{T}, 2, v2"); g.e(f"v_and_b32 v{T}, 28, v{T}")
        g.smov(43, 1 << 18)
        g.lbl(lp)
        g.e(f"buffer_load_dword v{T+1}, v{T}, s[{S_DBG}:{S_DBG+3}], 0 offen sc1"); g.wait(vm=0)
        g.e(f"v_mov_b32 v{T+2}, v{T+1}")
        for rot in (1, 2, 4):
            g.e("s_nop 1"); g.e(f"v_add_u32_dpp v{T+2}, v{T+2}, v{T+2} row_ror:{rot} row_mask:0xf bank_mask:0xf")
        g.e("s_nop 1")
        g.e(f"v_readfirstlane_b32 s54, v{T+2}")
        g.e(f"v_readlane_b32 s55, v{T+1}, 0"); g.e(f"v_readlane_b32 s56, v{T+1}, 1")
        g.e("s_nop 3")
        g.e("s_cmp_ge_u32 s54, 256"); g.e(f"s_cbranch_scc1 {dn}")
        g.e("s_sleep 1")
        g.e("s_sub_u32 s43, s43, 1"); g.e(f"s_cbranch_scc0 {lp}")
        g.lbl(dn)
        g.e("s_min_u32 s55, s55, s56"); g.e("s_cmp_lt_u32 s55, 32")
    def last(g):
        if isA:
            sk = g.new("cl")
            g.e("s_cmp_eq_u32 s32, 2"); g.e(f"s_cbranch_scc0 {sk}")
            g.smov(54, 63); store_word(g, S_WS, S_CPO, 54, chain.V_T + 21)
            g.lbl(sk)
    h = dict(pre_loop=pre_loop, pre_gather=pre_gather, end=end, decide=decide, last=last)
    h.update(HK)
    return h
g.e("s_and_b32 s54, s29, 1"); g.e("s_cmp_eq_u32 s54, 1"); g.e("s_cbranch_scc1 f_cB")
g.srd(S_W1, PWQ, 640*4096*2); g.srd(S_W2, PWK, 640*4096*2)
chain.gen_chain(g, 'A', fast, False, chain_hooks('A'), modes='both')
g.lbl("f_cB")
g.srd(S_W1, PWV, 640*4096*2); g.srd(S_W2, PWOB, 640*4096*2)
chain.gen_chain(g, 'B', fast, False, chain_hooks('B'), modes='both')
g.lbl("f_work")
ticket(g, "F", DBG_WORK, 40)
g.e("s_cmp_ge_u32 s40, 192"); g.e("s_cbranch_scc1 f_spare")
g.e("s_cmp_ge_u32 s40, 128"); g.e("s_cbranch_scc1 f_aq")
g.c("==== producer role")
g.srd(24, PX, 2048*1280)
g.e("s_and_b32 s33, s40, 1"); g.smov(35, 2); g.e("s_lshr_b32 s30, s40, 2")
g.e("s_bfe_u32 s54, s40, 0x10001"); g.e("s_lshl_b32 s54, s54, 6"); g.e("s_lshl_b32 s55, s33, 5"); g.e("s_add_u32 s54, s54, s55"); g.e("s_add_u32 s54, s54, s30")
g.e("s_lshl_b32 s41, s54, 2"); g.e(f"s_add_u32 s41, s41, {hex(WS_FLAGS + F_PROG*4)}")
g.smov(42, 0)
def prod_signal(g):
    g.wait(vm=0); g.e("s_barrier")
    g.e("s_add_u32 s42, s42, 1")
    sk = g.new("ps")
    g.e("s_cmp_eq_u32 s32, 0"); g.e(f"s_cbranch_scc0 {sk}")
    store_word(g, S_WS, 41, 42, 170)
    g.lbl(sk)
def zero_wait(g):
    tl(g, 1)
    g.smov(55, DBG_ZERO*4)
    wg_wait(g, "PZ", S_DBG, 55, 1, 4, lambda: g.smov(54, 1), 170, sleep=1)
g.e("s_bitcmp1_b32 s40, 1"); g.e("s_cbranch_scc1 f_pB")
g.srd(S_W1, PWQ, 640*4096*2); g.srd(S_W2, PWK, 640*4096*2)
producer.gen_producer(g, 'A', "PA", signal=prod_signal, pre=zero_wait)
tl(g, 3)
g.e("s_branch f_queue")
g.lbl("f_pB")
g.srd(S_W1, PWV, 640*4096*2); g.srd(S_W2, PWOB, 640*4096*2)
producer.gen_producer(g, 'B', "PB", signal=prod_signal, pre=zero_wait)
tl(g, 3)
g.e("s_branch f_queue")
g.lbl("f_aq")
g.c("==== A-branch QKV role (+zero flags, +wot)")
zs = g.new("zs")
g.e("s_cmp_eq_u32 s40, 128"); g.e(f"s_cbranch_scc0 {zs}")
g.e("v_lshlrev_b32 v4, 3, v0"); g.e("v_mov_b32 v6, 0"); g.e("v_mov_b32 v7, 0")
g.smov(54, WS_FLAGS)
g.e(f"buffer_store_dwordx2 v[6:7], v4, s[{S_WS}:{S_WS+3}], s54 offen sc1")
g.wait(vm=0); g.e("s_barrier")
z2 = g.new("z2")
g.e("s_cmp_eq_u32 s32, 0"); g.e(f"s_cbranch_scc0 {z2}")
g.smov(54, DBG_ZERO*4); g.smov(55, 1); store_word(g, S_DBG, 54, 55, 4)
g.lbl(z2)
g.lbl(zs)
ws_ = g.new("wt")
g.e("s_sub_u32 s30, s40, 129"); g.e("s_cmp_ge_u32 s30, 5"); g.e(f"s_cbranch_scc1 {ws_}")
g.srd(12, PWO, 640*1280)
final.gen_wot(g, "WT", 12, 30)
g.smov(55, DBG_WOT*4); wg_signal_add(g, "WT", S_DBG, 55, 4)
g.lbl(ws_)
g.srd(24, PX, 2048*1280); g.srd(12, PWQKV, 640*3840)
g.e("s_sub_u32 s54, s40, 128"); g.e("s_lshr_b32 s30, s54, 2"); g.e("s_and_b32 s33, s54, 3"); g.e("s_lshl_b32 s33, s33, 4"); g.e("s_add_u32 s34, s33, 16")
aqkv.gen_aqkv(g, "AQ")
g.smov(55, DBG_AQ*4); wg_signal_add(g, "AQ", S_DBG, 55, 4)
tl(g, 4)
g.lbl("f_queue")
ticket(g, "Q", DBG_QUEUE, 40)
g.e("s_cmp_ge_u32 s40, 256"); g.e("s_cbranch_scc1 f_fin")
g.c("==== attention item")
g.smov(55, DBG_AQ*4); wg_wait(g, "AW", S_DBG, 55, 1, 4, lambda: g.smov(54, 64), 4, sleep=4)
g.e("s_lshr_b32 s30, s40, 3"); g.e("s_and_b32 s31, s40, 7")
aattn.gen_aattn(g, "AT")
g.e("s_lshl_b32 s55, s31, 2"); g.e(f"s_add_u32 s55, s55, {hex(WS_FLAGS + F_ATT*4)}")
wg_signal_add(g, "AT", S_WS, 55, 4)
tl(g, 7)
g.e("s_branch f_queue")
g.lbl("f_fin")
tl(g, 5)
g.e("s_sub_u32 s40, s40, 256")
g.e(f"s_cmp_ge_u32 s40, {64*12}"); g.e("s_cbranch_scc1 f_end2")
g.smov(54, 0x15555556); g.e("s_mul_hi_u32 s30, s40, s54")
g.e("s_mul_i32 s54, s30, 12"); g.e("s_sub_u32 s31, s40, s54")
g.e("s_cmp_ge_u32 s31, 4"); g.e("s_cbranch_scc1 f_gout")
g.c("==== P item (s=s30, hg=s31)")
g.e("s_and_b32 s55, s30, 1"); g.e("s_lshl_b32 s55, s55, 5"); g.e("s_lshl_b32 s56, s31, 3"); g.e("s_add_u32 s55, s55, s56"); g.e("s_lshl_b32 s55, s55, 2")
g.e(f"s_add_u32 s55, s55, {hex(WS_FLAGS + F_PROG*4)}")
wg_wait(g, "PW", S_WS, 55, 8, 4, lambda: (g.e("s_lshr_b32 s54, s30, 1"), g.e("s_add_u32 s54, s54, 1")), 4, sleep=8)
def wait_km(g):
    g.e("s_lshl_b32 s55, s31, 5"); g.e(f"s_add_u32 s55, s55, {hex(WS_FLAGS + F_CHAIN*4)}")
    wg_wait(g, "PK", S_WS, 55, 8, 4, lambda: g.e("s_add_u32 s54, s30, 1"), 12, sleep=2)
final.gen_ptok(g, "PT", wait_km=wait_km)
g.e("s_lshl_b32 s55, s30, 2"); g.e(f"s_add_u32 s55, s55, {hex(WS_FLAGS + F_PCNT*4)}")
wg_signal_add(g, "PT", S_WS, 55, 4)
g.e("s_branch f_queue")
g.lbl("f_gout")
g.c("==== G item (s=s30, cg=s31-4)")
g.e("s_sub_u32 s31, s31, 4")
g.srd(24, PX, 2048*1280); g.srd(12, PGW, 1280); g.srd(16, POUT, 2048*1280)
def wait_a(g):
    g.smov(55, DBG_WOT*4); wg_wait(g, "GW", S_DBG, 55, 1, 4, lambda: g.smov(54, 5), 12, sleep=4)
    g.e("s_lshr_b32 s55, s30, 3"); g.e("s_lshl_b32 s55, s55, 2"); g.e(f"s_add_u32 s55, s55, {hex(WS_FLAGS + F_ATT*4)}")
    wg_wait(g, "GA", S_WS, 55, 1, 4, lambda: g.smov(54, 32), 12, sleep=8)
def wait_bf(g):
    g.e("s_and_b32 s55, s30, 1"); g.e("s_lshl_b32 s55, s55, 7"); g.e(f"s_add_u32 s55, s55, {hex(WS_FLAGS + (F_PROG+64)*4)}")
    wg_wait(g, "GB", S_WS, 55, 32, 4, lambda: (g.e("s_lshr_b32 s54, s30, 1"), g.e("s_add_u32 s54, s54, 1")), 12, sleep=8)
def wait_p(g):
    g.smov(55, WS_FLAGS + F_CHAIN*4)
    wg_wait(g, "GY", S_WS, 55, 32, 4, lambda: g.e("s_add_u32 s54, s30, 1"), 12, sleep=4)
    l63 = g.new("l63")
    g.e("s_cmp_eq_u32 s30, 63"); g.e(f"s_cbranch_scc0 {l63}")
    g.smov(55, WS_FLAGS + (F_CHAIN+32)*4)
    wg_wait(g, "GZ", S_WS, 55, 32, 4, lambda: g.smov(54, 64), 12, sleep=1)
    g.lbl(l63)
    g.e("s_lshl_b32 s55, s30, 2"); g.e(f"s_add_u32 s55, s55, {hex(WS_FLAGS + F_PCNT*4)}")
    wg_wait(g, "GP", S_WS, 55, 1, 4, lambda: g.smov(54, 4), 12, sleep=1)
final.gen_gout(g, "GO", 24, 12, 16, wait_a=wait_a, wait_p=wait_p, wait_bf=wait_bf)
g.e("s_branch f_queue")
g.e("s_branch f_end")
g.lbl("f_spare")
g.c("==== spare WG: some chain slot was not taken (fewer than 32 WGs on XCC 0 or 1). take the k-th missing slot")
sp = g.new("sp"); sd = g.new("sdn")
g.e("v_lshlrev_b32 v4, 2, v2"); g.e("v_and_b32 v4, 28, v4")
g.smov(43, 1 << 18)
g.lbl(sp)
g.e(f"buffer_load_dword v5, v4, s[{S_DBG}:{S_DBG+3}], 0 offen sc1"); g.wait(vm=0)
g.e("v_mov_b32 v6, v5")
for rot in (1, 2, 4):
    g.e("s_nop 1"); g.e(f"v_add_u32_dpp v6, v6, v6 row_ror:{rot} row_mask:0xf bank_mask:0xf")
g.e("s_nop 1")
g.e("v_readfirstlane_b32 s54, v6"); g.e("v_readlane_b32 s55, v5, 0"); g.e("v_readlane_b32 s56, v5, 1")
g.e("s_nop 3")
g.e("s_cmp_ge_u32 s54, 256"); g.e(f"s_cbranch_scc1 {sd}")
g.e("s_sleep 1")
g.e("s_sub_u32 s43, s43, 1"); g.e(f"s_cbranch_scc0 {sp}")
g.lbl(sd)
g.e("s_min_u32 s55, s55, 32"); g.e("s_min_u32 s56, s56, 32")
g.e("s_sub_u32 s40, s40, 192")
g.e("s_sub_u32 s54, 32, s55")
g.smov(28, 0); g.e("s_add_u32 s29, s55, s40")
g.e("s_cmp_lt_u32 s40, s54"); g.e("s_cbranch_scc1 f_chain")
g.e("s_sub_u32 s40, s40, s54"); g.smov(28, 1); g.e("s_add_u32 s29, s56, s40")
g.e("s_cmp_lt_u32 s29, 32"); g.e("s_cbranch_scc1 f_chain")
g.e("s_branch f_end")
g.lbl("f_end2")
tl(g, 6)
g.lbl("f_end"); g.e("s_endpgm")
hdr = HEADER + "; @launch grid=(256,1,1) block=(256,1,1) lds=163840\n"
out = hdr + '.amdgcn_target "amdgcn-amd-amdhsa--gfx950"\n.text\n' + g.text() + f""".section .rodata,"a"
.p2align 6
.amdhsa_kernel {KN}
  .amdhsa_next_free_vgpr 512
  .amdhsa_next_free_sgpr 102
  .amdhsa_accum_offset 256
  .amdhsa_group_segment_fixed_size 0
  .amdhsa_kernarg_size 112
  .amdhsa_user_sgpr_count 2
  .amdhsa_user_sgpr_kernarg_segment_ptr 1
  .amdhsa_system_sgpr_workgroup_id_x 1
.end_amdhsa_kernel
"""
open(sys.argv[1] if len(sys.argv) > 1 else "fused.s", "w").write(out)
```
